```python
import torch

def _softmax(x, axis=-1):
    return torch.softmax(x, dim=axis)
def _gelu(x):
    return torch.nn.functional.gelu(x, approximate="tanh")
def _silu(x):
    return torch.nn.functional.silu(x)
def _sigmoid(x):
    return torch.sigmoid(x)
def _layernorm(x, axis=-1, eps=1e-5):
    m = x.mean(dim=axis, keepdim=True)
    v = x.var(dim=axis, keepdim=True, unbiased=False)
    return (x - m) / torch.sqrt(v + eps)
def _scatter_add(tgt, idx, src, axis=0):
    return tgt.clone().index_add_(axis, idx, src)
def _segment_sum(src, seg, n):
    out = torch.zeros((n,) + src.shape[1:], dtype=src.dtype)
    return out.index_add_(0, seg, src)
def _pad(x, pw):
    flat = tuple(v for pair in reversed(pw) for v in pair)
    return torch.nn.functional.pad(x, flat)

kernel_name = 'standalone__linear_kernel_rfa__sampling'

def setup_inputs():

    _w = (lambda a: (lambda t: t.to(torch.bfloat16) if t.is_floating_point() else t)(torch.as_tensor(a)))
    B, H, Sq, Sk, D, M = 16, 32, 8, 2048, 128, 16
    return {
        "q": _w((lambda *s: torch.randn(*s, dtype=torch.bfloat16) * 0.2)(B, H, Sq, D)),
        "k": _w((lambda *s: torch.randn(*s, dtype=torch.bfloat16) * 1.6)(B, H, Sk, D)),
        "v": _w((lambda *s: torch.randn(*s, dtype=torch.bfloat16) * 1.6)(B, H, Sk, D)),
        "omega": _w((lambda *s: torch.randn(*s, dtype=torch.bfloat16) * 1.6)(M, D)),
    }

def reference(q, k, v, omega):
    d = q.shape[-1]
    m = omega.shape[0]
    scale = float(d) ** -0.25
    qs = q * scale
    ks = k * scale
    q_proj = torch.einsum("bhsd,md->bhsm", qs, omega)
    k_proj = torch.einsum("bhsd,md->bhsm", ks, omega)
    q_sq = 0.5 * torch.einsum("bhsd,bhsd->bhs", qs, qs)[..., None]
    k_sq = 0.5 * torch.einsum("bhsd,bhsd->bhs", ks, ks)[..., None]
    inv_sqrt_m = float(m) ** -0.5
    phi_q = torch.exp(q_proj - q_sq) * inv_sqrt_m + 1e-6
    phi_k = torch.exp(k_proj - k_sq) * inv_sqrt_m + 1e-6
    kv = torch.einsum("bhsm,bhsd->bhmd", phi_k, v)
    z  = torch.einsum("bhsm->bhm", phi_k)
    num = torch.einsum("bhqm,bhmd->bhqd", phi_q, kv)
    den = torch.einsum("bhqm,bhm->bhq", phi_q, z)[..., None] + 1e-6
    return num / den
```

```python
import sys, json

def gen(NWV=4, NS=2, POL="nt", MODE="full", STAMP=0, ROT=0, LDSPAD=0):
    TR = 32
    SLOT = TR * 256
    IPS = SLOT // 1024
    RING = NS * SLOT
    assert RING >= 9216
    LDS = NWV * RING + LDSPAD
    T = 2048 // (NWV * TR)
    STEP = NWV * TR * 256
    import math
    U = NS // math.gcd(NS, 2)
    NIT = T // U
    REM = T - NIT * U
    NB = 8 // NWV
    pol = (" " + POL) if POL else ""
    L = []
    A = L.append
    vKoff, vVoff, vKad, vVad = 4, 8, 10, 14
    vOm, vK, vV, vAcc, vZ = 24, 40, 72, 104, 136
    vP, vS, vT, vPhi, vPq = 140, 148, 156, 172, 176
    vHalf, vOnes, vC1, vD = 178, 180, 184, 186
    NV = 192
    def vr(b, n): return f"v[{b}:{b+n-1}]"

    A(f"; @launch grid=(512,1,1) block=({NWV*64},1,1) lds={LDS}")
    A('.amdgcn_target "amdgcn-amd-amdhsa--gfx950"')
    A(".text")
    A(".globl standalone__linear_kernel_rfa__sampling_kernel")
    A(".p2align 8")
    A(".type standalone__linear_kernel_rfa__sampling_kernel,@function")
    A("standalone__linear_kernel_rfa__sampling_kernel:")
    A("    s_cmp_ge_u32 s2, 512")
    A("    s_cbranch_scc1 L_done")
    A("    s_load_dwordx8 s[32:39], s[0:1], 0          ; q, k, v, omega")
    A("    s_load_dwordx2 s[40:41], s[0:1], 32         ; out")
    if STAMP:
        A("    s_load_dwordx2 s[46:47], s[0:1], 48         ; ws")
        A("    s_memrealtime s[48:49]")
    A("    v_readfirstlane_b32 s25, v0")
    A("    v_and_b32 v0, 63, v0                        ; lane")
    A("    v_and_b32 v1, 15, v0                        ; j")
    A("    v_lshrrev_b32 v2, 4, v0                     ; g")
    A("    s_lshr_b32 s25, s25, 6")
    A(f"    s_mul_i32 s26, s25, {RING}")
    A("    v_xor_b32 v3, v1, v2                        ; j ^ g")
    A("    v_lshlrev_b32 v22, 8, v2                    ; g*256")
    for p in range(4):
        A(f"    v_xor_b32 v23, {4*p}, v3")
        A(f"    v_lshl_add_u32 v{vKoff+p}, v23, 4, v22")
    A("    v_lshlrev_b32 v23, 1, v2")
    A("    v_xor_b32 v3, v1, v23                       ; j ^ 2g")
    for p in range(2):
        A(f"    v_xor_b32 v23, {8*p}, v3")
        A(f"    v_lshl_add_u32 v{vVoff+p}, v23, 4, v22")
    A("    v_lshlrev_b32 v22, 4, v2                    ; g*16")
    A("    v_lshl_add_u32 v23, v1, 8, v22              ; j*256 + g*16 (omega)")
    A("    v_and_b32 v3, 7, v1")
    A("    v_lshl_add_u32 v22, v3, 8, v22              ; (j&7)*256 + g*16 (q)")
    A("    s_lshl_b32 s42, s2, 19")
    A("    s_lshl_b32 s43, s2, 11")
    A(f"    s_lshl_b32 s20, s25, {13}")
    if ROT:
        pass
    A("    s_waitcnt lgkmcnt(0)")
    A("    s_add_u32 s4, s34, s42")
    A("    s_addc_u32 s5, s35, 0")
    A("    s_and_b32 s5, s5, 0xffff")
    A("    s_mov_b32 s6, 0x80000")
    A("    s_mov_b32 s7, 0x20000")
    A("    s_add_u32 s8, s36, s42")
    A("    s_addc_u32 s9, s37, 0")
    A("    s_and_b32 s9, s9, 0xffff")
    A("    s_mov_b32 s10, 0x80000")
    A("    s_mov_b32 s11, 0x20000")
    A("    s_add_u32 s12, s32, s43")
    A("    s_addc_u32 s13, s33, 0")
    A("    s_and_b32 s13, s13, 0xffff")
    A("    s_mov_b32 s14, 2048")
    A("    s_mov_b32 s15, 0x20000")
    A("    s_mov_b32 s16, s38")
    A("    s_and_b32 s17, s39, 0xffff")
    A("    s_mov_b32 s18, 4096")
    A("    s_mov_b32 s19, 0x20000")
    A("    s_add_u32 s21, s20, 4096")
    A("    s_mov_b32 s22, s20")
    A("    s_mov_b32 s23, s21")
    for t in range(4):
        A(f"    buffer_load_dwordx4 {vr(vOm+4*t,4)}, v23, s[16:19], 0 offen offset:{64*t}")
    for t in range(4):
        A(f"    buffer_load_dwordx4 {vr(vV+4*t,4)}, v22, s[12:15], 0 offen offset:{64*t}")

    def issue(x):
        slot = x % NS
        isK = (x % 2 == 0)
        srd = "s[4:7]" if isK else "s[8:11]"
        so = ("s20", "s21") if isK else ("s22", "s23")
        for half in range(2):
            A(f"    s_add_u32 m0, s26, {slot*SLOT + half*4096}")
            A("    s_nop 0")
            for i in range(4):
                vo = (vKoff + i) if isK else (vVoff + (i & 1))
                A(f"    buffer_load_dwordx4 v{vo}, {srd}, {so[half]} offen offset:{1024*i}{pol} lds")
        A(f"    s_add_u32 {so[0]}, {so[0]}, {STEP}")
        A(f"    s_add_u32 {so[1]}, {so[1]}, {STEP}")

    for x in range(NS):
        issue(x)

    A("    v_lshlrev_b32 v22, 8, v1                    ; j*256")
    A("    v_add_u32 v22, s26, v22")
    A("    v_xor_b32 v3, v1, v2                        ; j ^ g")
    for t in range(4):
        A(f"    v_xor_b32 v23, {4*t}, v3")
        A(f"    v_lshl_add_u32 v{vKad+t}, v23, 4, v22")
    A("    v_lshrrev_b32 v3, 2, v0                     ; 4g+r")
    A("    v_lshlrev_b32 v22, 8, v3                    ; row*256")
    A("    v_add_u32 v22, s26, v22")
    A("    v_and_b32 v23, 3, v0")
    A("    v_lshl_add_u32 v22, v23, 3, v22             ; + 8c")
    A("    v_and_b32 v3, 7, v3                         ; s&7")
    for b in range(8):
        A(f"    v_xor_b32 v23, {b}, v3")
        A(f"    v_lshl_add_u32 v{vVad+b}, v23, 5, v22")
    A("    s_mov_b32 s27, 0xffff0000")
    A("    s_mov_b32 s28, 0x3e9837f0                   ; 128^-0.25 (f32)")
    A("    s_mov_b32 s29, 0x3e9837f0")
    A("    s_mov_b32 s30, 0x3fb8aa3b                   ; log2(e)")
    A("    s_mov_b32 s31, 0x3e800000                   ; 0.25")
    A(f"    v_mov_b32 v{vHalf}, 0.5")
    for i in range(4):
        A(f"    v_mov_b32 v{vOnes+i}, 0x3f803f80")
    A(f"    v_mov_b32 v{vC1}, 0x358637bd               ; 1e-6")
    for i in range(36):
        A(f"    v_mov_b32 v{vAcc+i}, 0")

    def scale_regs(base, n, dacc, first):
        for i in range(n):
            t = vT + 2 * (i % 4)
            A(f"    v_lshlrev_b32 v{t}, 16, v{base+i}")
            A(f"    v_and_b32 v{t+1}, s27, v{base+i}")
            A(f"    v_pk_mul_f32 {vr(t,2)}, {vr(t,2)}, s[28:29]")
            A(f"    v_cvt_pk_bf16_f32 v{base+i}, v{t}, v{t+1}")
            if first and i == 0:
                A(f"    v_dot2_f32_bf16 v{dacc}, v{base+i}, v{base+i}, 0")
            else:
                A(f"    v_dot2_f32_bf16 v{dacc}, v{base+i}, v{base+i}, v{dacc}")

    def feat(P, S, O):
        t = vT + 8
        A(f"    v_cvt_pk_bf16_f32 v{t}, v{P}, v{P+1}")
        A(f"    v_cvt_pk_bf16_f32 v{t+1}, v{P+2}, v{P+3}")
        A(f"    v_cvt_pk_bf16_f32 v{t+2}, v{S}, v{S+1}")
        A(f"    v_cvt_pk_bf16_f32 v{t+3}, v{S+2}, v{S+3}")
        def unpack(dst, src0, src1):
            A(f"    v_lshlrev_b32 v{dst}, 16, v{src0}")
            A(f"    v_and_b32 v{dst+1}, s27, v{src0}")
            A(f"    v_lshlrev_b32 v{dst+2}, 16, v{src1}")
            A(f"    v_and_b32 v{dst+3}, s27, v{src1}")
        unpack(P, t, t + 1)
        unpack(S, t + 2, t + 3)
        for r in range(4):
            A(f"    v_sub_f32 v{P+r}, v{P+r}, v{S+r}")
        A(f"    v_cvt_pk_bf16_f32 v{t}, v{P}, v{P+1}")
        A(f"    v_cvt_pk_bf16_f32 v{t+1}, v{P+2}, v{P+3}")
        unpack(P, t, t + 1)
        for r in range(4):
            A(f"    v_mul_f32 v{P+r}, s30, v{P+r}")
        for r in range(4):
            A(f"    v_exp_f32 v{P+r}, v{P+r}")
        A("    s_nop 0")
        A(f"    v_cvt_pk_bf16_f32 v{t}, v{P}, v{P+1}")
        A(f"    v_cvt_pk_bf16_f32 v{t+1}, v{P+2}, v{P+3}")
        unpack(P, t, t + 1)
        for r in range(4):
            A(f"    v_fma_f32 v{P+r}, v{P+r}, s31, v{vC1}")
        A(f"    v_cvt_pk_bf16_f32 v{O}, v{P}, v{P+1}")
        A(f"    v_cvt_pk_bf16_f32 v{O+1}, v{P+2}, v{P+3}")

    A(f"    s_waitcnt vmcnt({NS*IPS})")
    scale_regs(vV, 16, vD, True)
    A("    s_nop 2")
    for t in range(4):
        c = "0" if t == 0 else vr(vP, 4)
        A(f"    v_mfma_f32_16x16x32_bf16 {vr(vP,4)}, {vr(vOm+4*t,4)}, {vr(vV+4*t,4)}, {c}")
    A(f"    v_mfma_f32_16x16x4_f32 {vr(vS,4)}, v{vHalf}, v{vD}, 0")
    A("    s_nop 7")
    A("    s_nop 7")
    feat(vP, vS, vPq)

    def tile(x):
        a, b = x % NS, (x + 1) % NS
        A(f"    s_waitcnt vmcnt({(NS-1)*IPS})")
        if MODE == "full":
            for u in range(2):
                for t in range(4):
                    A(f"    ds_read_b128 {vr(vK+16*u+4*t,4)}, v{vKad+t} offset:{a*SLOT+u*4096}")
            A("    s_waitcnt lgkmcnt(0)")
        issue(x + NS)
        if MODE == "full":
            for u in range(2):
                scale_regs(vK + 16 * u, 16, vD + u, True)
            A("    s_nop 2")
            for u in range(2):
                for t in range(4):
                    c = "0" if t == 0 else vr(vP + 4 * u, 4)
                    A(f"    v_mfma_f32_16x16x32_bf16 {vr(vP+4*u,4)}, {vr(vK+16*u+4*t,4)}, {vr(vOm+4*t,4)}, {c}")
                A(f"    v_mfma_f32_16x16x4_f32 {vr(vS+4*u,4)}, v{vD+u}, v{vHalf}, 0")
            A("    s_nop 7")
            A("    s_nop 7")
            feat(vP, vS, vPhi)
            feat(vP + 4, vS + 4, vPhi + 2)
        A(f"    s_waitcnt vmcnt({(NS-1)*IPS})")
        if MODE == "full":
            for bb in range(8):
                for u in range(2):
                    A(f"    ds_read_b64_tr_b16 {vr(vV+4*bb+2*u,2)}, v{vVad+bb} offset:{b*SLOT+u*4096}")
            A("    s_waitcnt lgkmcnt(0)")
        issue(x + 1 + NS)
        if MODE == "full":
            for bb in range(8):
                A(f"    v_mfma_f32_16x16x32_bf16 {vr(vAcc+4*bb,4)}, {vr(vPhi,4)}, {vr(vV+4*bb,4)}, {vr(vAcc+4*bb,4)}")
            A(f"    v_mfma_f32_16x16x32_bf16 {vr(vZ,4)}, {vr(vPhi,4)}, {vr(vOnes,4)}, {vr(vZ,4)}")

    A(f"    s_mov_b32 s24, {NIT}")
    A(".p2align 6")
    A("L_loop:")
    for n in range(U):
        tile(2 * n)
    A("    s_sub_u32 s24, s24, 1")
    A("    s_cmp_lg_u32 s24, 0")
    A("    s_cbranch_scc1 L_loop")
    for n in range(REM):
        tile(2 * n)

    A("    s_waitcnt vmcnt(0)")
    A("    s_nop 7")
    A("    s_nop 7")
    A("    v_lshlrev_b32 v22, 4, v0                    ; lane*16")
    A("    v_add_u32 v23, s26, v22")
    for bb in range(8):
        A(f"    ds_write_b128 v23, {vr(vAcc+4*bb,4)} offset:{bb*1024}")
    A(f"    ds_write_b128 v23, {vr(vZ,4)} offset:8192")
    A("    s_waitcnt lgkmcnt(0)")
    A("    s_barrier")
    A(f"    s_mul_i32 s44, s25, {NB*1024}")
    A("    v_add_u32 v23, s44, v22")
    assert NWV * NB * 4 <= 32
    for w in range(NWV):
        A(f"    v_add_u32 v3, {w*RING}, v23")
        for bb in range(NB):
            A(f"    ds_read_b128 {vr(vK+4*(w*NB+bb),4)}, v3 offset:{bb*1024}")
        A(f"    v_add_u32 v3, {w*RING}, v22")
        A(f"    ds_read_b128 {vr(vV+4*w,4)}, v3 offset:8192")
    A("    s_waitcnt lgkmcnt(0)")
    for w in range(1, NWV):
        for bb in range(NB):
            for r in range(4):
                A(f"    v_add_f32 v{vK+4*bb+r}, v{vK+4*bb+r}, v{vK+4*(w*NB+bb)+r}")
        for r in range(4):
            A(f"    v_add_f32 v{vV+r}, v{vV+r}, v{vV+4*w+r}")
    for bb in range(NB):
        A(f"    v_cvt_pk_bf16_f32 v{vT+2*bb}, v{vK+4*bb}, v{vK+4*bb+1}")
        A(f"    v_cvt_pk_bf16_f32 v{vT+2*bb+1}, v{vK+4*bb+2}, v{vK+4*bb+3}")
    A(f"    v_cvt_pk_bf16_f32 v{vT+8}, v{vV}, v{vV+1}")
    A(f"    v_cvt_pk_bf16_f32 v{vT+9}, v{vV+2}, v{vV+3}")
    A("    s_nop 1")
    for bb in range(NB):
        A(f"    v_mfma_f32_16x16x16_bf16 {vr(vAcc+4*bb,4)}, {vr(vT+2*bb,2)}, {vr(vPq,2)}, 0")
    A(f"    v_mfma_f32_16x16x16_bf16 {vr(vZ,4)}, {vr(vT+8,2)}, {vr(vPq,2)}, 0")
    A("    v_lshlrev_b32 v22, 8, v1                    ; j*256")
    A("    v_lshl_add_u32 v22, v2, 3, v22              ; + g*8")
    A(f"    s_mul_i32 s44, s25, {NB*32}")
    A("    v_add_u32 v22, s44, v22")
    A("    s_add_u32 s12, s40, s43")
    A("    s_addc_u32 s13, s41, 0")
    A("    s_and_b32 s13, s13, 0xffff")
    A("    s_nop 7")
    A("    s_nop 7")
    A(f"    v_cvt_pk_bf16_f32 v{vT}, v{vZ}, v{vZ}")
    A(f"    v_and_b32 v{vT}, s27, v{vT}")
    A(f"    v_add_f32 v{vT}, v{vT}, v{vC1}")
    A(f"    v_cvt_pk_bf16_f32 v{vT}, v{vT}, v{vT}")
    A(f"    v_and_b32 v{vT}, s27, v{vT}               ; den")
    A(f"    v_rcp_f32 v{vT+1}, v{vT}")
    for bb in range(NB):
        a = vAcc + 4 * bb
        A(f"    v_cvt_pk_bf16_f32 v{vT+2}, v{a}, v{a+1}")
        A(f"    v_cvt_pk_bf16_f32 v{vT+3}, v{a+2}, v{a+3}")
        A(f"    v_lshlrev_b32 v{a}, 16, v{vT+2}")
        A(f"    v_and_b32 v{a+1}, s27, v{vT+2}")
        A(f"    v_lshlrev_b32 v{a+2}, 16, v{vT+3}")
        A(f"    v_and_b32 v{a+3}, s27, v{vT+3}")
        for r in range(4):
            A(f"    v_mul_f32 v{vT+4+r}, v{a+r}, v{vT+1}")
        for r in range(4):
            A(f"    v_fma_f32 v{vT+8+r}, -v{vT+4+r}, v{vT}, v{a+r}")
        for r in range(4):
            A(f"    v_fma_f32 v{vT+4+r}, v{vT+8+r}, v{vT+1}, v{vT+4+r}")
        for r in range(4):
            A(f"    v_div_fixup_f32 v{vT+4+r}, v{vT+4+r}, v{vT}, v{a+r}")
        A(f"    v_cvt_pk_bf16_f32 v{a}, v{vT+4}, v{vT+5}")
        A(f"    v_cvt_pk_bf16_f32 v{a+1}, v{vT+6}, v{vT+7}")
        A(f"    buffer_store_dwordx2 {vr(a,2)}, v22, s[12:15], 0 offen offset:{bb*32}")
    if STAMP:
        A("    s_waitcnt vmcnt(0)")
        A("    s_memrealtime s[50:51]")
        A("    s_getreg_b32 s52, hwreg(HW_REG_XCC_ID)")
        A("    s_getreg_b32 s53, hwreg(HW_REG_HW_ID)")
        A("    s_waitcnt lgkmcnt(0)")
        A("    s_mov_b32 s44, s46")
        A("    s_and_b32 s45, s47, 0xffff")
        A("    s_mov_b32 s46, 0x100000")
        A("    s_mov_b32 s47, 0x20000")
        A("    v_mov_b32 v40, s48")
        A("    v_mov_b32 v41, s49")
        A("    v_mov_b32 v42, s50")
        A("    v_mov_b32 v43, s51")
        A("    v_mov_b32 v44, s52")
        A("    v_mov_b32 v45, s53")
        A(f"    s_mul_i32 s54, s2, {NWV}")
        A("    s_add_u32 s54, s54, s25")
        A("    s_lshl_b32 s54, s54, 5")
        A("    v_mov_b32 v46, s54")
        A("    v_cmp_eq_u32 vcc, 0, v0")
        A("    s_and_saveexec_b64 s[56:57], vcc")
        A("    buffer_store_dwordx4 v[40:43], v46, s[44:47], 0 offen")
        A("    buffer_store_dwordx2 v[44:45], v46, s[44:47], 0 offen offset:16")
        A("    s_mov_b64 exec, s[56:57]")
    A("L_done:")
    A("    s_endpgm")
    A('.section .rodata,"a"')
    A(".p2align 6")
    A(".amdhsa_kernel standalone__linear_kernel_rfa__sampling_kernel")
    A(f"  .amdhsa_next_free_vgpr {NV}")
    A("  .amdhsa_next_free_sgpr 64")
    A(f"  .amdhsa_accum_offset {NV}")
    A("  .amdhsa_group_segment_fixed_size 0")
    A("  .amdhsa_kernarg_size 56")
    A("  .amdhsa_user_sgpr_count 2")
    A("  .amdhsa_user_sgpr_kernarg_segment_ptr 1")
    A("  .amdhsa_system_sgpr_workgroup_id_x 1")
    A("  .amdhsa_float_denorm_mode_32 3")
    A(".end_amdhsa_kernel")
    return "\n".join(L) + "\n"

if __name__ == "__main__":
    kw = {}
    out = sys.argv[1]
    for a in sys.argv[2:]:
        k, v = a.split("=")
        try: v = int(v)
        except ValueError: pass
        kw[k] = v
    open(out, "w").write(gen(**kw))
```

```python
import sys

def gen(D=20, POL="nt", STAMP=0, SLEEP=1, PRIO=3, MIMIC=1):
    NC = 4
    SLOTB = 16384
    RING = 8 * SLOTB
    SCR = RING
    ZSC = SCR + 24576
    FLG = ZSC + 4096
    F_FULL, F_FREE, F_DONE = FLG, FLG + 256, FLG + 256 + 1024
    LDS = FLG + 2304
    assert LDS <= 163840
    NT = 128
    pol = (" " + POL) if POL else ""
    L = []; A = L.append
    vKoff, vVoff, vKad, vVad = 4, 8, 10, 14
    vOm, vK, vV, vAcc, vZ = 24, 40, 72, 104, 136
    vP, vS, vT, vPhi, vPq = 140, 148, 156, 172, 176
    vHalf, vOnes, vC1, vD = 180, 184, 188, 190
    vFl, vFa = 22, 23
    vX = 192
    NV = 200
    def vr(b, n): return f"v[{b}:{b+n-1}]"
    uid = [0]
    def lab(p):
        uid[0] += 1
        return f"L_{p}{uid[0]}"

    A(f"; @launch grid=(256,1,1) block=(320,1,1) lds={LDS}")
    A('.amdgcn_target "amdgcn-amd-amdhsa--gfx950"')
    A(".text")
    A(".globl standalone__linear_kernel_rfa__sampling_kernel")
    A(".p2align 8")
    A(".type standalone__linear_kernel_rfa__sampling_kernel,@function")
    A("standalone__linear_kernel_rfa__sampling_kernel:")
    A("    s_cmp_ge_u32 s2, 256")
    A("    s_cbranch_scc1 L_done")
    A("    s_load_dwordx8 s[32:39], s[0:1], 0          ; q, k, v, omega")
    A("    s_load_dwordx2 s[40:41], s[0:1], 32         ; out")
    if STAMP:
        A("    s_load_dwordx2 s[46:47], s[0:1], 48         ; ws")
        A("    s_memrealtime s[48:49]")
    A("    v_readfirstlane_b32 s25, v0")
    A("    v_and_b32 v0, 63, v0                        ; lane")
    A("    v_and_b32 v1, 15, v0                        ; j")
    A("    v_lshrrev_b32 v2, 4, v0                     ; g")
    A("    s_lshr_b32 s25, s25, 6")
    A("    s_lshl_b32 s42, s2, 20")
    A("    s_mov_b32 s59, 0x200000")
    A("    s_cmp_lg_u32 s25, 0")
    A("    s_cbranch_scc1 L_consumer")

    if PRIO: A(f"    s_setprio {PRIO}")
    A("    v_xor_b32 v3, v1, v2                        ; j ^ g")
    A("    v_lshlrev_b32 v22, 8, v2                    ; g*256")
    for p in range(4):
        A(f"    v_xor_b32 v23, {4*p}, v3")
        A(f"    v_lshl_add_u32 v{vKoff+p}, v23, 4, v22")
    A("    v_lshlrev_b32 v23, 1, v2")
    A("    v_xor_b32 v3, v1, v23                       ; j ^ 2g")
    for p in range(2):
        A(f"    v_xor_b32 v23, {8*p}, v3")
        A(f"    v_lshl_add_u32 v{vVoff+p}, v23, 4, v22")
    A("    v_lshlrev_b32 v12, 2, v0                    ; lane*4")
    A(f"    v_add_u32 v12, {F_FULL}, v12")
    A("    v_mov_b32 v13, 0")
    for k in range(8):
        A(f"    ds_write_b32 v12, v13 offset:{256 + 256*k}")
    A("    v_mov_b32 v14, 0x80000000")
    A("    ds_write_b32 v12, v14")
    A("    v_and_b32 v15, 3, v0")
    A("    v_lshlrev_b32 v15, 8, v15")
    A(f"    v_add_u32 v15, {F_FREE}, v15")
    A("    s_waitcnt lgkmcnt(0)")
    A("    s_barrier")
    A("    s_add_u32 s4, s34, s42")
    A("    s_addc_u32 s5, s35, 0")
    A("    s_and_b32 s5, s5, 0xffff")
    A("    s_mov_b32 s6, 0x100000")
    A("    s_mov_b32 s7, 0x20000")
    A("    s_add_u32 s8, s36, s42")
    A("    s_addc_u32 s9, s37, 0")
    A("    s_and_b32 s9, s9, 0xffff")
    A("    s_mov_b32 s10, 0x100000")
    A("    s_mov_b32 s11, 0x20000")
    i0 = (D - 1) % 8
    val0 = (i0 - (D - 1)) // 8
    A("    s_mov_b32 s20, 0                            ; x (tile)")
    A("    s_mov_b32 s21, 0")
    A(f"    s_mov_b32 s22, {val0}")
    A("    v_mov_b32 v16, 0")
    A(".p2align 6")
    A("L_ld:")
    A("    s_and_b32 s23, s20, 3")
    A("    s_lshl_b32 s26, s23, 15")
    A("    s_and_b32 s27, s20, 4")
    A("    s_lshl_b32 s27, s27, 12")
    A("    s_add_u32 s26, s26, s27")
    A("    s_lshr_b32 s28, s20, 2")
    A("    s_add_i32 s28, s28, -1")
    A("L_ld_chk:")
    A("    s_waitcnt lgkmcnt(0)")
    A("    v_readlane_b32 s29, v16, s23")
    A("    s_add_u32 s30, s21, 4096")
    A("    s_nop 2")
    A("    s_cmp_ge_i32 s29, s28")
    A("    s_cbranch_scc1 L_ld_go")
    A("    s_sub_u32 s59, s59, 1")
    A("    s_cbranch_scc1 L_done")
    A("    ds_read_b32 v16, v15")
    A("    s_branch L_ld_chk")
    A("L_ld_go:")
    for i in range(16):
        half = i // 8
        srd = "s[4:7]" if half == 0 else "s[8:11]"
        if i % 4 == 0:
            A(f"    s_add_u32 m0, s26, {i*1024}")
        A(f"    s_waitcnt vmcnt({D-1})")
        if i % 8 == i0:
            A(f"    v_mov_b32 v13, s22")
            A(f"    s_add_i32 s22, s22, 1")
            A(f"    ds_write_b32 v12, v13")
        if i == 9:
            A("    ds_read_b32 v16, v15")
        vo = (vKoff + (i & 3)) if half == 0 else (vVoff + (i & 1))
        so = "s21" if (i % 8) < 4 else "s30"
        A(f"    buffer_load_dwordx4 v{vo}, {srd}, {so} offen offset:{1024*(i&3)}{pol} lds")
    A("    s_add_u32 s20, s20, 1")
    A("    s_add_u32 s21, s21, 8192")
    A(f"    s_cmp_lt_u32 s20, {NT}")
    A("    s_cbranch_scc1 L_ld")
    total = NT * 16
    lastj = total - 16 + 8 + i0
    nextval = (lastj - (D - 1)) // 8 + 1
    for val in range(nextval, 2 * NT + 1):
        A(f"    s_waitcnt vmcnt({total - 8*val})")
        A(f"    v_mov_b32 v13, {val}")
        A(f"    ds_write_b32 v12, v13")
    A("    s_waitcnt lgkmcnt(0)")
    if STAMP:
        A("    s_branch L_stamp")
    else:
        A("    s_endpgm")

    A("L_consumer:")
    A("    s_sub_u32 s25, s25, 1                       ; c")
    A("    s_lshl_b32 s26, s25, 15")
    A("    s_lshl_b32 s43, s2, 12")
    A("    v_lshlrev_b32 v22, 4, v2                    ; g*16")
    A("    v_lshl_add_u32 v23, v1, 8, v22              ; j*256 + g*16 (omega)")
    A("    v_and_b32 v3, 7, v1")
    A("    v_lshl_add_u32 v22, v3, 8, v22              ; (j&7)*256 + g*16 (q)")
    A("    s_waitcnt lgkmcnt(0)")
    A("    s_barrier")
    A("    s_add_u32 s12, s32, s43")
    A("    s_addc_u32 s13, s33, 0")
    A("    s_and_b32 s13, s13, 0xffff")
    A("    s_mov_b32 s14, 4096")
    A("    s_mov_b32 s15, 0x20000")
    A("    s_mov_b32 s16, s38")
    A("    s_and_b32 s17, s39, 0xffff")
    A("    s_mov_b32 s18, 4096")
    A("    s_mov_b32 s19, 0x20000")
    for t in range(4):
        A(f"    buffer_load_dwordx4 {vr(vOm+4*t,4)}, v23, s[16:19], 0 offen offset:{64*t}")
    for t in range(4):
        A(f"    buffer_load_dwordx4 {vr(vV+4*t,4)}, v22, s[12:15], 0 offen offset:{64*t}")
    for t in range(4):
        A(f"    buffer_load_dwordx4 {vr(vV+16+4*t,4)}, v22, s[12:15], 0 offen offset:{2048+64*t}")
    A("    v_lshlrev_b32 v22, 8, v1                    ; j*256")
    A("    v_add_u32 v22, s26, v22")
    A("    v_xor_b32 v3, v1, v2                        ; j ^ g")
    for t in range(4):
        A(f"    v_xor_b32 v23, {4*t}, v3")
        A(f"    v_lshl_add_u32 v{vKad+t}, v23, 4, v22")
    A("    v_lshrrev_b32 v3, 2, v0                     ; 4g+r")
    A("    v_lshlrev_b32 v22, 8, v3                    ; row*256")
    A("    v_add_u32 v22, s26, v22")
    A("    v_and_b32 v23, 3, v0")
    A("    v_lshl_add_u32 v22, v23, 3, v22             ; + 8c4")
    A("    v_add_u32 v22, 8192, v22")
    A("    v_and_b32 v3, 7, v3                         ; s&7")
    A("    s_lshl_b32 s44, s25, 1                      ; 2c")
    for b in range(8):
        A(f"    s_add_u32 s45, s44, {b}")
        A(f"    s_and_b32 s45, s45, 7")
        A(f"    v_xor_b32 v23, s45, v3")
        A(f"    v_lshl_add_u32 v{vVad+b}, v23, 5, v22")
    A("    v_lshlrev_b32 v3, 4, v0                     ; lane*16")
    for k in range(1, 4):
        A(f"    s_add_u32 s45, s25, {k}")
        A(f"    s_and_b32 s45, s45, 3")
        A(f"    s_mul_i32 s45, s45, 6144")
        A(f"    s_add_u32 s45, s45, {SCR + (k-1)*2048}")
        A(f"    v_add_u32 v{vX+k-1}, s45, v3")
    A(f"    s_mul_i32 s45, s25, 6144")
    A(f"    s_add_u32 s45, s45, {SCR}")
    A(f"    v_add_u32 v{vX+3}, s45, v3")
    A(f"    s_lshl_b32 s45, s25, 10")
    A(f"    s_add_u32 s45, s45, {ZSC}")
    A(f"    v_add_u32 v{vX+4}, s45, v3")
    A(f"    v_add_u32 v{vX+5}, {ZSC}, v3")
    A("    v_lshlrev_b32 v3, 2, v0")
    A("    s_lshl_b32 s45, s25, 8")
    A(f"    s_add_u32 s45, s45, {F_FREE}")
    A(f"    v_add_u32 v{vX+6}, s45, v3")
    A("    v_and_b32 v3, 3, v0")
    A("    v_lshlrev_b32 v3, 8, v3")
    A(f"    v_add_u32 v{vX+7}, {F_DONE}, v3")
    A(f"    v_mov_b32 v{vFa}, {F_FULL}")
    A("    s_mov_b32 s27, 0xffff0000")
    A("    s_mov_b32 s28, 0x3e9837f0                   ; 128^-0.25 (f32)")
    A("    s_mov_b32 s29, 0x3e9837f0")
    A("    s_mov_b32 s30, 0x3fb8aa3b                   ; log2(e)")
    A("    s_mov_b32 s31, 0x3e800000                   ; 0.25")
    A(f"    v_mov_b32 v{vHalf}, 0.5")
    for i in range(4):
        A(f"    v_mov_b32 v{vOnes+i}, 0x3f803f80")
    A(f"    v_mov_b32 v{vC1}, 0x358637bd               ; 1e-6")

    def scale_regs(base, n, dacc):
        for i in range(n):
            t = vT + 2 * (i % 4)
            A(f"    v_lshlrev_b32 v{t}, 16, v{base+i}")
            A(f"    v_and_b32 v{t+1}, s27, v{base+i}")
            A(f"    v_pk_mul_f32 {vr(t,2)}, {vr(t,2)}, s[28:29]")
            A(f"    v_cvt_pk_bf16_f32 v{base+i}, v{t}, v{t+1}")
            if i == 0:
                A(f"    v_dot2_f32_bf16 v{dacc}, v{base+i}, v{base+i}, 0")
            else:
                A(f"    v_dot2_f32_bf16 v{dacc}, v{base+i}, v{base+i}, v{dacc}")

    def feat(P, S, O):
        t = vT + 8
        A(f"    v_cvt_pk_bf16_f32 v{t}, v{P}, v{P+1}")
        A(f"    v_cvt_pk_bf16_f32 v{t+1}, v{P+2}, v{P+3}")
        A(f"    v_cvt_pk_bf16_f32 v{t+2}, v{S}, v{S+1}")
        A(f"    v_cvt_pk_bf16_f32 v{t+3}, v{S+2}, v{S+3}")
        def unpack(dst, src0, src1):
            A(f"    v_lshlrev_b32 v{dst}, 16, v{src0}")
            A(f"    v_and_b32 v{dst+1}, s27, v{src0}")
            A(f"    v_lshlrev_b32 v{dst+2}, 16, v{src1}")
            A(f"    v_and_b32 v{dst+3}, s27, v{src1}")
        unpack(P, t, t + 1)
        unpack(S, t + 2, t + 3)
        for r in range(4):
            A(f"    v_sub_f32 v{P+r}, v{P+r}, v{S+r}")
        A(f"    v_cvt_pk_bf16_f32 v{t}, v{P}, v{P+1}")
        A(f"    v_cvt_pk_bf16_f32 v{t+1}, v{P+2}, v{P+3}")
        unpack(P, t, t + 1)
        for r in range(4):
            A(f"    v_mul_f32 v{P+r}, s30, v{P+r}")
        for r in range(4):
            A(f"    v_exp_f32 v{P+r}, v{P+r}")
        A("    s_nop 0")
        A(f"    v_cvt_pk_bf16_f32 v{t}, v{P}, v{P+1}")
        A(f"    v_cvt_pk_bf16_f32 v{t+1}, v{P+2}, v{P+3}")
        unpack(P, t, t + 1)
        for r in range(4):
            A(f"    v_fma_f32 v{P+r}, v{P+r}, s31, v{vC1}")
        A(f"    v_cvt_pk_bf16_f32 v{O}, v{P}, v{P+1}")
        A(f"    v_cvt_pk_bf16_f32 v{O+1}, v{P+2}, v{P+3}")

    A("    s_waitcnt vmcnt(0)")
    for h in range(2):
        scale_regs(vV + 16 * h, 16, vD)
        A("    s_nop 2")
        for t in range(4):
            c = "0" if t == 0 else vr(vP, 4)
            A(f"    v_mfma_f32_16x16x32_bf16 {vr(vP,4)}, {vr(vOm+4*t,4)}, {vr(vV+16*h+4*t,4)}, {c}")
        A(f"    v_mfma_f32_16x16x4_f32 {vr(vS,4)}, v{vHalf}, v{vD}, 0")
        A("    s_nop 7")
        A("    s_nop 7")
        feat(vP, vS, vPq + 2 * h)

    def poll_full(sneed):
        l = lab("pf"); g = lab("pg")
        A(f"{l}:")
        A(f"    ds_read_b32 v{vFl}, v{vFa}")
        A("    s_waitcnt lgkmcnt(0)")
        A(f"    v_readfirstlane_b32 s45, v{vFl}")
        A("    s_nop 1")
        A(f"    s_cmp_ge_i32 s45, {sneed}")
        A(f"    s_cbranch_scc1 {g}")
        A("    s_sub_u32 s59, s59, 1")
        A("    s_cbranch_scc1 L_done")
        if SLEEP: A(f"    s_sleep {SLEEP}")
        A(f"    s_branch {l}")
        A(f"{g}:")

    A("    s_add_u32 s12, s40, s43")
    A("    s_addc_u32 s13, s41, 0")
    A("    s_and_b32 s13, s13, 0xffff")
    A("    s_mov_b32 s14, 2048")
    A("    s_lshl_b32 s20, s25, 1")
    A("    s_add_u32 s20, s20, 1                       ; K needed: 2x+1")
    A("    s_mov_b32 s22, 0")
    A("    s_mov_b32 s23, 1                            ; epoch")
    A("L_bh:")
    for i in range(36):
        A(f"    v_mov_b32 v{vAcc+i}, 0")
    A("    s_mov_b32 s24, 16")
    A(".p2align 6")
    A("L_tile:")
    poll_full("s20")
    for u in range(2):
        for t in range(4):
            A(f"    ds_read_b128 {vr(vK+16*u+4*t,4)}, v{vKad+t} offset:{u*4096}")
    A("    s_add_u32 s21, s20, 1")
    A("    s_waitcnt lgkmcnt(0)")
    for u in range(2):
        scale_regs(vK + 16 * u, 16, vD + u)
    A("    s_nop 2")
    for u in range(2):
        for t in range(4):
            c = "0" if t == 0 else vr(vP + 4 * u, 4)
            A(f"    v_mfma_f32_16x16x32_bf16 {vr(vP+4*u,4)}, {vr(vK+16*u+4*t,4)}, {vr(vOm+4*t,4)}, {c}")
        A(f"    v_mfma_f32_16x16x4_f32 {vr(vS+4*u,4)}, v{vD+u}, v{vHalf}, 0")
    A("    s_nop 7")
    A("    s_nop 7")
    feat(vP, vS, vPhi)
    feat(vP + 4, vS + 4, vPhi + 2)
    poll_full("s21")
    for bb in range(8):
        for u in range(2):
            A(f"    ds_read_b64_tr_b16 {vr(vV+4*bb+2*u,2)}, v{vVad+bb} offset:{u*4096}")
    A("    s_add_u32 s22, s22, 1")
    A(f"    v_mov_b32 v{vFl}, s22")
    A("    s_waitcnt lgkmcnt(0)")
    A(f"    ds_write_b32 v{vX+6}, v{vFl}                ; free")
    for bb in range(8):
        A(f"    v_mfma_f32_16x16x32_bf16 {vr(vAcc+4*bb,4)}, {vr(vPhi,4)}, {vr(vV+4*bb,4)}, {vr(vAcc+4*bb,4)}")
    A(f"    v_mfma_f32_16x16x32_bf16 {vr(vZ,4)}, {vr(vPhi,4)}, {vr(vOnes,4)}, {vr(vZ,4)}")
    for t in range(4):
        A(f"    v_xor_b32 v{vKad+t}, 0x4000, v{vKad+t}")
    for b in range(8):
        A(f"    v_xor_b32 v{vVad+b}, 0x4000, v{vVad+b}")
    A("    s_add_u32 s20, s20, 8")
    A("    s_sub_u32 s24, s24, 1")
    A("    s_cmp_lg_u32 s24, 0")
    A("    s_cbranch_scc1 L_tile")

    A("    s_nop 7")
    for k in range(1, 4):
        for bb in range(2):
            A(f"    ds_write_b128 v{vX+k-1}, {vr(vAcc+8*k+4*bb,4)} offset:{bb*1024}")
    A(f"    ds_write_b128 v{vX+4}, {vr(vZ,4)}")
    A(f"    v_mov_b32 v{vFl}, s23")
    A("    s_waitcnt lgkmcnt(0)")
    A(f"    ds_write_b32 v{vX+6}, v{vFl} offset:1024")
    l = lab("pd")
    A(f"{l}:")
    A(f"    ds_read_b32 v{vFl}, v{vX+7}")
    A("    s_waitcnt lgkmcnt(0)")
    A("    s_sub_u32 s59, s59, 1")
    A("    s_cbranch_scc1 L_done")
    A(f"    v_cmp_gt_u32 vcc, s23, v{vFl}")
    A(f"    s_cbranch_vccnz {l}")
    for k in range(1, 4):
        for bb in range(2):
            A(f"    ds_read_b128 {vr(vK+8*(k-1)+4*bb,4)}, v{vX+3} offset:{(k-1)*2048+bb*1024}")
    for w in range(4):
        A(f"    ds_read_b128 {vr(vV+4*w,4)}, v{vX+5} offset:{w*1024}")
    A("    v_lshlrev_b32 v3, 8, v1                     ; j*256")
    A("    v_lshl_add_u32 v3, v2, 3, v3                ; + g*8")
    A("    s_lshl_b32 s44, s25, 6")
    A("    v_add_u32 v3, s44, v3")
    A("    s_waitcnt lgkmcnt(0)")
    for k in range(1, 4):
        for bb in range(2):
            for r in range(4):
                A(f"    v_add_f32 v{vAcc+4*bb+r}, v{vAcc+4*bb+r}, v{vK+8*(k-1)+4*bb+r}")
    for w in range(1, 4):
        for r in range(4):
            A(f"    v_add_f32 v{vV+r}, v{vV+r}, v{vV+4*w+r}")
    for bb in range(2):
        A(f"    v_cvt_pk_bf16_f32 v{vT+2*bb}, v{vAcc+4*bb}, v{vAcc+4*bb+1}")
        A(f"    v_cvt_pk_bf16_f32 v{vT+2*bb+1}, v{vAcc+4*bb+2}, v{vAcc+4*bb+3}")
    A(f"    v_cvt_pk_bf16_f32 v{vT+8}, v{vV}, v{vV+1}")
    A(f"    v_cvt_pk_bf16_f32 v{vT+9}, v{vV+2}, v{vV+3}")
    A("    s_nop 1")
    for bb in range(2):
        A(f"    v_mfma_f32_16x16x16_bf16 {vr(vAcc+4*bb,4)}, {vr(vT+2*bb,2)}, {vr(vPq,2)}, 0")
    A(f"    v_mfma_f32_16x16x16_bf16 {vr(vZ,4)}, {vr(vT+8,2)}, {vr(vPq,2)}, 0")
    A("    s_nop 7")
    A("    s_nop 1")
    A(f"    v_cvt_pk_bf16_f32 v{vT}, v{vZ}, v{vZ}")
    A(f"    v_and_b32 v{vT}, s27, v{vT}")
    A(f"    v_add_f32 v{vT}, v{vT}, v{vC1}")
    A(f"    v_cvt_pk_bf16_f32 v{vT}, v{vT}, v{vT}")
    A(f"    v_and_b32 v{vT}, s27, v{vT}               ; den")
    A(f"    v_rcp_f32 v{vT+1}, v{vT}")
    for bb in range(2):
        a = vAcc + 4 * bb
        A(f"    v_cvt_pk_bf16_f32 v{vT+2}, v{a}, v{a+1}")
        A(f"    v_cvt_pk_bf16_f32 v{vT+3}, v{a+2}, v{a+3}")
        A(f"    v_lshlrev_b32 v{a}, 16, v{vT+2}")
        A(f"    v_and_b32 v{a+1}, s27, v{vT+2}")
        A(f"    v_lshlrev_b32 v{a+2}, 16, v{vT+3}")
        A(f"    v_and_b32 v{a+3}, s27, v{vT+3}")
        for r in range(4):
            A(f"    v_mul_f32 v{vT+4+r}, v{a+r}, v{vT+1}")
        for r in range(4):
            A(f"    v_fma_f32 v{vT+8+r}, -v{vT+4+r}, v{vT}, v{a+r}")
        for r in range(4):
            A(f"    v_fma_f32 v{vT+4+r}, v{vT+8+r}, v{vT+1}, v{vT+4+r}")
        for r in range(4):
            A(f"    v_div_fixup_f32 v{vT+4+r}, v{vT+4+r}, v{vT}, v{a+r}")
        A(f"    v_cvt_pk_bf16_f32 v{a}, v{vT+4}, v{vT+5}")
        A(f"    v_cvt_pk_bf16_f32 v{a+1}, v{vT+6}, v{vT+7}")
        A(f"    buffer_store_dwordx2 {vr(a,2)}, v3, s[12:15], 0 offen offset:{bb*32}")
    A("    s_cmp_eq_u32 s23, 2")
    A("    s_cbranch_scc1 L_fin")
    A("    s_mov_b32 s23, 2")
    A("    s_add_u32 s12, s12, 2048")
    A("    s_addc_u32 s13, s13, 0")
    A(f"    v_mov_b32 v{vPq}, v{vPq+2}")
    A(f"    v_mov_b32 v{vPq+1}, v{vPq+3}")
    A("    s_branch L_bh")
    A("L_fin:")
    if STAMP:
        A("L_stamp:")
        A("    s_waitcnt vmcnt(0)")
        A("    s_memrealtime s[50:51]")
        A("    s_getreg_b32 s52, hwreg(HW_REG_XCC_ID)")
        A("    s_getreg_b32 s53, hwreg(HW_REG_HW_ID)")
        A("    s_waitcnt lgkmcnt(0)")
        A("    s_mov_b32 s44, s46")
        A("    s_and_b32 s45, s47, 0xffff")
        A("    s_mov_b32 s46, 0x100000")
        A("    s_mov_b32 s47, 0x20000")
        for i, s in enumerate((48, 49, 50, 51, 52, 53)):
            A(f"    v_mov_b32 v{40+i}, s{s}")
        A("    v_readfirstlane_b32 s55, v200") if False else None
        A(f"    s_mul_i32 s54, s2, 5")
        A("    s_add_u32 s54, s54, s58")
        A("    s_lshl_b32 s54, s54, 5")
        A("    v_mov_b32 v46, s54")
        A("    v_cmp_eq_u32 vcc, 0, v0")
        A("    s_and_saveexec_b64 s[56:57], vcc")
        A("    buffer_store_dwordx4 v[40:43], v46, s[44:47], 0 offen")
        A("    buffer_store_dwordx2 v[44:45], v46, s[44:47], 0 offen offset:16")
        A("    s_mov_b64 exec, s[56:57]")
    A("L_done:")
    A("    s_endpgm")
    A('.section .rodata,"a"')
    A(".p2align 6")
    A(".amdhsa_kernel standalone__linear_kernel_rfa__sampling_kernel")
    A(f"  .amdhsa_next_free_vgpr {NV}")
    A("  .amdhsa_next_free_sgpr 64")
    A(f"  .amdhsa_accum_offset {NV}")
    A("  .amdhsa_group_segment_fixed_size 0")
    A("  .amdhsa_kernarg_size 56")
    A("  .amdhsa_user_sgpr_count 2")
    A("  .amdhsa_user_sgpr_kernarg_segment_ptr 1")
    A("  .amdhsa_system_sgpr_workgroup_id_x 1")
    A("  .amdhsa_float_denorm_mode_32 3")
    A(".end_amdhsa_kernel")
    L2 = [x for x in L if x is not None]
    s = "\n".join(L2) + "\n"
    if STAMP:
        s = s.replace("    s_lshr_b32 s25, s25, 6                      ; wave id\n", "    s_lshr_b32 s25, s25, 6                      ; wave id\n    s_mov_b32 s58, s25\n")
    return s

if __name__ == "__main__":
    kw = {}
    out = sys.argv[1]
    for a in sys.argv[2:]:
        k, v = a.split("=")
        try: v = int(v)
        except ValueError: pass
        kw[k] = v
    open(out, "w").write(gen(**kw))
```

```python
import sys

def gen(DLO=18, DHI=22, DINIT=20, POL="nt", STAMP=0, SLEEP=1, PRIO=3, MIMIC=1, CTL=1, CK0=8, CKI=8, NCK=15, STATIC=0, CSLEEP=3, RMAP=0, CMODE=6, LAG=4, GAIN=2.0, DMID=20.0, WIN=400, STPOL="sc0 sc1", LDPOL="", NOST=0, NOLD=0, DBG=1, PUB=1, FIXD=0, STRIDE=128, MINC=4, NPUB=32, ROT=0):
    NC = 4
    SLOTB = 16384
    RING = 8 * SLOTB
    SCR = RING
    ZSC = SCR + 24576
    FLG = ZSC + 4096
    F_FULL, F_FREE, F_DONE = FLG, FLG + 256, FLG + 256 + 1024
    F_CTL = FLG + 2304
    LDS = FLG + 2304 + 256
    assert LDS <= 163840
    NT = 128
    pol = (" " + POL) if POL else ""
    L = []; A = L.append
    vKoff, vVoff, vKad, vVad = 4, 8, 10, 14
    vOm, vK, vV, vAcc, vZ = 24, 40, 72, 104, 136
    vP, vS, vT, vPhi, vPq = 140, 148, 156, 172, 176
    vHalf, vOnes, vC1, vD = 180, 184, 188, 190
    vFl, vFa = 22, 23
    vX = 192
    NV = 200
    def vr(b, n): return f"v[{b}:{b+n-1}]"
    uid = [0]
    def lab(p):
        uid[0] += 1
        return f"L_{p}{uid[0]}"

    A(f"; @launch grid=(256,1,1) block=({384 if CTL==1 else 320},1,1) lds={LDS}")
    A('.amdgcn_target "amdgcn-amd-amdhsa--gfx950"')
    A(".text")
    A(".globl standalone__linear_kernel_rfa__sampling_kernel")
    A(".p2align 8")
    A(".type standalone__linear_kernel_rfa__sampling_kernel,@function")
    A("standalone__linear_kernel_rfa__sampling_kernel:")
    A("    s_cmp_ge_u32 s2, 256")
    A("    s_cbranch_scc1 L_done")
    A("    s_load_dwordx8 s[32:39], s[0:1], 0          ; q, k, v, omega")
    A("    s_load_dwordx4 s[40:43], s[0:1], 32")
    A("    s_load_dwordx2 s[46:47], s[0:1], 48         ; ws")
    if STAMP:
        A("    s_memrealtime s[48:49]")
    A("    v_readfirstlane_b32 s25, v0")
    A("    v_and_b32 v0, 63, v0                        ; lane")
    A("    v_and_b32 v1, 15, v0                        ; j")
    A("    v_lshrrev_b32 v2, 4, v0                     ; g")
    A("    s_lshr_b32 s25, s25, 6")
    A("    s_lshl_b32 s62, s2, 20")
    A("    s_mov_b32 s59, 0x200000")
    if CTL == 1:
        A("    s_cmp_eq_u32 s25, 5")
        A("    s_cbranch_scc1 L_ctl")
    A("    s_cmp_lg_u32 s25, 0")
    A("    s_cbranch_scc1 L_consumer")

    if PRIO: A(f"    s_setprio {PRIO}")
    A("    v_xor_b32 v3, v1, v2                        ; j ^ g")
    A("    v_lshlrev_b32 v22, 8, v2                    ; g*256")
    for p in range(4):
        A(f"    v_xor_b32 v23, {4*p}, v3")
        A(f"    v_lshl_add_u32 v{vKoff+p}, v23, 4, v22")
    A("    v_lshlrev_b32 v23, 1, v2")
    A("    v_xor_b32 v3, v1, v23                       ; j ^ 2g")
    for p in range(2):
        A(f"    v_xor_b32 v23, {8*p}, v3")
        A(f"    v_lshl_add_u32 v{vVoff+p}, v23, 4, v22")
    A("    v_lshlrev_b32 v12, 2, v0                    ; lane*4")
    A(f"    v_add_u32 v12, {F_FULL}, v12")
    A("    v_mov_b32 v13, 0")
    for k in range(8):
        A(f"    ds_write_b32 v12, v13 offset:{256 + 256*k}")
    A("    v_mov_b32 v14, 0x80000000")
    A("    ds_write_b32 v12, v14")
    if STATIC == 1:
        A("    s_bfe_u32 s23, s2, 0x10003                  ; (wg>>3)&1")
        A(f"    s_mul_i32 s23, s23, {DHI-DLO}")
        A(f"    s_add_u32 s23, s23, {DLO}")
        A("    v_mov_b32 v14, s23")
    elif STATIC == 2:
        A("    s_and_b32 s23, s2, 1")
        A(f"    s_mul_i32 s23, s23, {DHI-DLO}")
        A(f"    s_add_u32 s23, s23, {DLO}")
        A("    v_mov_b32 v14, s23")
    else:
        A(f"    v_mov_b32 v14, {DINIT}")
    A(f"    ds_write_b32 v12, v14 offset:{F_CTL-F_FULL}")
    A("    v_and_b32 v15, 3, v0")
    A("    v_lshlrev_b32 v15, 8, v15")
    A(f"    v_add_u32 v15, {F_FREE}, v15")
    A(f"    v_mov_b32 v14, {F_CTL}")
    A("    v_cmp_eq_u32 vcc, 4, v0")
    A("    v_cndmask_b32 v15, v15, v14, vcc")
    A("    ds_read_b32 v16, v15")
    A("    s_waitcnt lgkmcnt(0)")
    A("    s_barrier")
    A("    s_add_u32 s4, s34, s62")
    A("    s_addc_u32 s5, s35, 0")
    A("    s_and_b32 s5, s5, 0xffff")
    A("    s_mov_b32 s6, 0x100000")
    A("    s_mov_b32 s7, 0x20000")
    A("    s_add_u32 s8, s36, s62")
    A("    s_addc_u32 s9, s37, 0")
    A("    s_and_b32 s9, s9, 0xffff")
    A("    s_mov_b32 s10, 0x100000")
    A("    s_mov_b32 s11, 0x20000")
    A("    s_mov_b32 s20, 0                            ; x (tile)")
    if ROT == 1:
        A("    s_and_b32 s19, s2, 63")
    elif ROT == 2:
        A("    s_lshr_b32 s19, s2, 2")
    elif ROT == 3:
        A("    s_mul_i32 s19, s2, 11")
    elif ROT == 4:
        A("    s_lshr_b32 s19, s2, 3")
        A("    s_lshl_b32 s19, s19, 1")
    elif ROT == 5:
        A("    s_mul_i32 s19, s2, 37")
    else:
        A("    s_mov_b32 s19, 0")
    A("    s_and_b32 s19, s19, 63")
    A("    s_lshl_b32 s21, s19, 13")
    A(f"    s_mov_b32 s22, 0x80000000")
    A(".p2align 6")
    A("L_ld:")
    A("    s_and_b32 s23, s20, 3")
    A("    s_lshl_b32 s26, s23, 15")
    A("    s_and_b32 s27, s20, 4")
    A("    s_lshl_b32 s27, s27, 12")
    A("    s_add_u32 s26, s26, s27")
    A("    s_lshr_b32 s28, s20, 2")
    A("    s_add_i32 s28, s28, -1")
    if STAMP == 2:
        A("    s_memrealtime s[60:61]")
    A("L_ld_chk:")
    A("    s_waitcnt lgkmcnt(0)")
    if STAMP == 2:
        A("    s_mov_b32 m0, s20")
        A("    s_bitcmp1_b32 s20, 6")
        A("    s_cbranch_scc1 L_st_hi")
        A("    v_writelane_b32 v17, s60, m0")
        A("    s_branch L_st_dn")
        A("L_st_hi:")
        A("    v_writelane_b32 v18, s60, m0")
        A("L_st_dn:")
    A("    v_readlane_b32 s29, v16, s23")
    A("    v_readlane_b32 s31, v16, 4")
    A("    s_add_u32 s30, s21, 4096")
    A("    s_lshl_b32 s24, s20, 1                      ; 2x")
    A("    s_nop 1")
    A("    s_cmp_ge_i32 s29, s28")
    A("    s_cbranch_scc1 L_ld_go")
    A("    s_sub_u32 s59, s59, 1")
    A("    s_cbranch_scc1 L_done")
    A("    ds_read_b32 v16, v15")
    A("    s_branch L_ld_chk")
    A("L_ld_go:")
    DS = list(range(DLO, DHI + 1))
    for D in DS[:-1]:
        A(f"    s_cmp_le_u32 s31, {D}")
        A(f"    s_cbranch_scc1 L_var{D}")
    for D in reversed(DS):
        A(f"L_var{D}:")
        i0 = (D - 1) % 8
        for i in range(16):
            half = i // 8
            srd = "s[4:7]" if half == 0 else "s[8:11]"
            if i % 4 == 0:
                A(f"    s_add_u32 m0, s26, {i*1024}")
            A(f"    s_waitcnt vmcnt({D-1})")
            if i % 8 == i0:
                c = (i - (D - 1)) // 8
                A(f"    s_add_i32 s27, s24, {c}")
                A(f"    s_max_i32 s22, s22, s27")
                A(f"    v_mov_b32 v13, s22")
                A(f"    ds_write_b32 v12, v13")
            if i == 9:
                A("    ds_read_b32 v16, v15")
            vo = (vKoff + (i & 3)) if half == 0 else (vVoff + (i & 1))
            so = "s21" if (i % 8) < 4 else "s30"
            A(f"    buffer_load_dwordx4 v{vo}, {srd}, {so} offen offset:{1024*(i&3)}{pol} lds")
        A("    s_add_u32 s20, s20, 1")
        if ROT:
            A("    s_add_u32 s21, s20, s19")
            A("    s_and_b32 s21, s21, 63")
            A("    s_and_b32 s27, s20, 64")
            A("    s_or_b32 s21, s21, s27")
            A("    s_lshl_b32 s21, s21, 13")
        else:
            A("    s_add_u32 s21, s21, 8192")
        A(f"    s_cmp_lt_u32 s20, {NT}")
        A("    s_cbranch_scc1 L_ld")
        if D != DS[0]:
            A("    s_branch L_drain")
    A("L_drain:")
    total = NT * 16
    first = 2 * NT - 1 - max(0, (DHI - 1) // 8 - 1) - 1
    for val in range(first, 2 * NT + 1):
        A(f"    s_waitcnt vmcnt({total - 8*val})")
        A(f"    s_max_i32 s22, s22, {val}")
        A(f"    v_mov_b32 v13, s22")
        A(f"    ds_write_b32 v12, v13")
    A("    s_waitcnt lgkmcnt(0)")
    if STAMP == 2:
        A("    s_mov_b32 s4, s46")
        A("    s_and_b32 s5, s47, 0xffff")
        A("    s_mov_b32 s6, 0x1000000")
        A("    s_mov_b32 s7, 0x20000")
        A("    s_lshl_b32 s20, s2, 9")
        A("    s_add_u32 s20, s20, 0x100000")
        A("    v_lshlrev_b32 v19, 2, v0")
        A("    buffer_store_dword v17, v19, s[4:7], s20 offen")
        A("    buffer_store_dword v18, v19, s[4:7], s20 offen offset:256")
    if STAMP:
        A("    s_branch L_stamp")
    else:
        A("    s_endpgm")

    if CTL == 1:
        import struct
        def f32(x): return "0x%08x" % struct.unpack("<I", struct.pack("<f", x))[0]
        def wait_full(sneed, tag):
            A(f"L_ck{tag}:")
            A("    ds_read_b32 v6, v4")
            A("    s_waitcnt lgkmcnt(0)")
            A("    v_readfirstlane_b32 s45, v6")
            A("    s_nop 1")
            A(f"    s_cmp_ge_i32 s45, {sneed}")
            A(f"    s_cbranch_scc1 L_ck{tag}_go")
            A("    s_sub_u32 s59, s59, 1")
            A("    s_cbranch_scc1 L_done")
            A(f"    s_sleep {CSLEEP}")
            A(f"    s_branch L_ck{tag}")
            A(f"L_ck{tag}_go:")
        ROWB = NPUB * STRIDE
        PSH = {64: 2, 32: 3, 16: 4, 8: 5}[NPUB]
        A("L_ctl:")
        A("    s_waitcnt lgkmcnt(0)")
        A("    s_barrier")
        A("    s_add_u32 s4, s46, 0x200000")
        A("    s_addc_u32 s5, s47, 0")
        if STAMP == 2 and DBG:
            A("    s_mov_b32 s8, s4")
            A("    s_and_b32 s9, s5, 0xffff")
            A("    s_mov_b32 s10, 0x100000")
            A("    s_mov_b32 s11, 0x20000")
        A(f"    v_mov_b32 v4, {F_FULL}")
        A(f"    v_mov_b32 v5, {F_CTL}")
        A(f"    s_lshr_b32 s26, s2, {PSH}                     ; l")
        A(f"    s_mul_i32 s33, s26, {STRIDE}")
        A(f"    s_xor_b32 s26, s26, s2")
        A(f"    s_and_b32 s32, s26, {(1 << PSH) - 1 if PSH <= 3 else 7}")
        if PSH > 3:
            A(f"    s_bfe_u32 s26, s2, {(PSH-3) << 16 | 3}")
            A("    s_or_b32 s32, s32, s26")
        A(f"    s_mov_b32 s20, {2*CK0}")
        A("    s_mov_b32 s44, 0")
        A(f"    s_mov_b32 s24, {NCK}")
        A(f"    s_mov_b32 s27, {f32(GAIN/100.0)}")
        A(f"    s_mov_b32 s28, {f32(DMID + 0.5)}")
        A(f"    s_mov_b32 s35, {2*WIN}")
        A("L_ckl:")
        wait_full("s20", "a")
        A("    s_memrealtime s[30:31]")
        A(f"    s_add_u32 s23, s20, {2*LAG}")
        A("    s_waitcnt lgkmcnt(0)")
        if not NOST:
            A("    s_cmp_lg_u32 s32, 0")
            A("    s_cbranch_scc1 L_ck_nopub")
            A("    s_mov_b32 s34, s30")
            A("    s_atomic_swap s34, s[4:5], s33")
            A("L_ck_nopub:")
        wait_full("s23", "b")
        if not NOLD:
            for l in range(NPUB):
                A(f"    s_load_dword s{64+l}, s[4:5], {l*STRIDE}")
        A(f"    s_sub_u32 s22, {WIN}, s30")
        A("    s_mov_b32 s25, 0                            ; sum")
        A("    s_mov_b32 s26, 0                            ; count")
        A("    s_waitcnt lgkmcnt(0)")
        for l in range(NPUB):
            A(f"    s_add_u32 s{64+l}, s{64+l}, s22")
            A(f"    s_cmp_lt_u32 s{64+l}, s35")
            A(f"    s_cselect_b32 s{64+l}, s{64+l}, 0")
            A(f"    s_addc_u32 s26, s26, 0")
            A(f"    s_add_u32 s25, s25, s{64+l}")
        A(f"    s_cmp_lt_u32 s26, {MINC}")
        A("    s_cbranch_scc1 L_ck_dbg")
        A(f"    s_mul_i32 s22, s26, {WIN}")
        A("    s_sub_i32 s25, s22, s25")
        A("    v_cvt_f32_i32 v10, s25")
        A("    v_cvt_f32_u32 v13, s26")
        A("    v_rcp_f32 v13, v13")
        A("    s_nop 0")
        A("    v_mul_f32 v10, v10, v13")
        A("    v_mul_f32 v10, s27, v10")
        A("    v_add_f32 v10, s28, v10")
        A("    v_cvt_i32_f32 v10, v10")
        A(f"    v_max_i32 v10, {DLO}, v10")
        A(f"    v_min_i32 v10, {DHI}, v10")
        if FIXD:
            A(f"    v_mov_b32 v10, {DINIT}")
        A("    ds_write_b32 v5, v10")
        A("L_ck_dbg:")
        if STAMP == 2 and DBG:
            A("    s_mov_b64 exec, 1")
            A("    s_lshl_b32 s25, s2, 6")
            A("    s_add_u32 s25, s25, s44")
            A("    s_add_u32 s25, s25, 0x80000")
            A("    v_mov_b32 v14, s25")
            A("    s_lshl_b32 s26, s26, 8")
            A("    v_or_b32 v13, s26, v10")
            A("    buffer_store_dword v13, v14, s[8:11], 0 offen")
            A("    s_mov_b64 exec, -1")
        A(f"    s_add_u32 s20, s20, {2*CKI}")
        A("    s_add_u32 s44, s44, 4")
        A(f"    s_add_u32 s4, s4, {ROWB}")
        A(f"    s_addc_u32 s5, s5, 0")
        A("    s_sub_u32 s24, s24, 1")
        A("    s_cmp_lg_u32 s24, 0")
        A("    s_cbranch_scc1 L_ckl")
        A("    s_waitcnt vmcnt(0) lgkmcnt(0)")
        A("    s_endpgm")

    A("L_consumer:")
    A("    s_sub_u32 s25, s25, 1                       ; c")
    A("    s_lshl_b32 s26, s25, 15")
    A("    s_lshl_b32 s63, s2, 12")
    A("    v_lshlrev_b32 v22, 4, v2                    ; g*16")
    A("    v_lshl_add_u32 v23, v1, 8, v22              ; j*256 + g*16 (omega)")
    A("    v_and_b32 v3, 7, v1")
    A("    v_lshl_add_u32 v22, v3, 8, v22              ; (j&7)*256 + g*16 (q)")
    A("    s_waitcnt lgkmcnt(0)")
    A("    s_barrier")
    A("    s_add_u32 s12, s32, s63")
    A("    s_addc_u32 s13, s33, 0")
    A("    s_and_b32 s13, s13, 0xffff")
    A("    s_mov_b32 s14, 4096")
    A("    s_mov_b32 s15, 0x20000")
    A("    s_mov_b32 s16, s38")
    A("    s_and_b32 s17, s39, 0xffff")
    A("    s_mov_b32 s18, 4096")
    A("    s_mov_b32 s19, 0x20000")
    for t in range(4):
        A(f"    buffer_load_dwordx4 {vr(vOm+4*t,4)}, v23, s[16:19], 0 offen offset:{64*t}")
    for t in range(4):
        A(f"    buffer_load_dwordx4 {vr(vV+4*t,4)}, v22, s[12:15], 0 offen offset:{64*t}")
    for t in range(4):
        A(f"    buffer_load_dwordx4 {vr(vV+16+4*t,4)}, v22, s[12:15], 0 offen offset:{2048+64*t}")
    A("    v_lshlrev_b32 v22, 8, v1                    ; j*256")
    A("    v_add_u32 v22, s26, v22")
    A("    v_xor_b32 v3, v1, v2                        ; j ^ g")
    for t in range(4):
        A(f"    v_xor_b32 v23, {4*t}, v3")
        A(f"    v_lshl_add_u32 v{vKad+t}, v23, 4, v22")
    A("    v_lshrrev_b32 v3, 2, v0                     ; 4g+r")
    A("    v_lshlrev_b32 v22, 8, v3                    ; row*256")
    A("    v_add_u32 v22, s26, v22")
    A("    v_and_b32 v23, 3, v0")
    A("    v_lshl_add_u32 v22, v23, 3, v22             ; + 8c4")
    A("    v_add_u32 v22, 8192, v22")
    A("    v_and_b32 v3, 7, v3                         ; s&7")
    A("    s_lshl_b32 s44, s25, 1                      ; 2c")
    for b in range(8):
        A(f"    s_add_u32 s45, s44, {b}")
        A(f"    s_and_b32 s45, s45, 7")
        A(f"    v_xor_b32 v23, s45, v3")
        A(f"    v_lshl_add_u32 v{vVad+b}, v23, 5, v22")
    A("    v_lshlrev_b32 v3, 4, v0                     ; lane*16")
    for k in range(1, 4):
        A(f"    s_add_u32 s45, s25, {k}")
        A(f"    s_and_b32 s45, s45, 3")
        A(f"    s_mul_i32 s45, s45, 6144")
        A(f"    s_add_u32 s45, s45, {SCR + (k-1)*2048}")
        A(f"    v_add_u32 v{vX+k-1}, s45, v3")
    A(f"    s_mul_i32 s45, s25, 6144")
    A(f"    s_add_u32 s45, s45, {SCR}")
    A(f"    v_add_u32 v{vX+3}, s45, v3")
    A(f"    s_lshl_b32 s45, s25, 10")
    A(f"    s_add_u32 s45, s45, {ZSC}")
    A(f"    v_add_u32 v{vX+4}, s45, v3")
    A(f"    v_add_u32 v{vX+5}, {ZSC}, v3")
    A("    v_lshlrev_b32 v3, 2, v0")
    A("    s_lshl_b32 s45, s25, 8")
    A(f"    s_add_u32 s45, s45, {F_FREE}")
    A(f"    v_add_u32 v{vX+6}, s45, v3")
    A("    v_and_b32 v3, 3, v0")
    A("    v_lshlrev_b32 v3, 8, v3")
    A(f"    v_add_u32 v{vX+7}, {F_DONE}, v3")
    A(f"    v_mov_b32 v{vFa}, {F_FULL}")
    A("    s_mov_b32 s27, 0xffff0000")
    A("    s_mov_b32 s28, 0x3e9837f0                   ; 128^-0.25 (f32)")
    A("    s_mov_b32 s29, 0x3e9837f0")
    A("    s_mov_b32 s30, 0x3fb8aa3b                   ; log2(e)")
    A("    s_mov_b32 s31, 0x3e800000                   ; 0.25")
    A(f"    v_mov_b32 v{vHalf}, 0.5")
    for i in range(4):
        A(f"    v_mov_b32 v{vOnes+i}, 0x3f803f80")
    A(f"    v_mov_b32 v{vC1}, 0x358637bd               ; 1e-6")

    def scale_regs(base, n, dacc):
        for i in range(n):
            t = vT + 2 * (i % 4)
            A(f"    v_lshlrev_b32 v{t}, 16, v{base+i}")
            A(f"    v_and_b32 v{t+1}, s27, v{base+i}")
            A(f"    v_pk_mul_f32 {vr(t,2)}, {vr(t,2)}, s[28:29]")
            A(f"    v_cvt_pk_bf16_f32 v{base+i}, v{t}, v{t+1}")
            if i == 0:
                A(f"    v_dot2_f32_bf16 v{dacc}, v{base+i}, v{base+i}, 0")
            else:
                A(f"    v_dot2_f32_bf16 v{dacc}, v{base+i}, v{base+i}, v{dacc}")

    def feat(P, S, O):
        t = vT + 8
        A(f"    v_cvt_pk_bf16_f32 v{t}, v{P}, v{P+1}")
        A(f"    v_cvt_pk_bf16_f32 v{t+1}, v{P+2}, v{P+3}")
        A(f"    v_cvt_pk_bf16_f32 v{t+2}, v{S}, v{S+1}")
        A(f"    v_cvt_pk_bf16_f32 v{t+3}, v{S+2}, v{S+3}")
        def unpack(dst, src0, src1):
            A(f"    v_lshlrev_b32 v{dst}, 16, v{src0}")
            A(f"    v_and_b32 v{dst+1}, s27, v{src0}")
            A(f"    v_lshlrev_b32 v{dst+2}, 16, v{src1}")
            A(f"    v_and_b32 v{dst+3}, s27, v{src1}")
        unpack(P, t, t + 1)
        unpack(S, t + 2, t + 3)
        for r in range(4):
            A(f"    v_sub_f32 v{P+r}, v{P+r}, v{S+r}")
        A(f"    v_cvt_pk_bf16_f32 v{t}, v{P}, v{P+1}")
        A(f"    v_cvt_pk_bf16_f32 v{t+1}, v{P+2}, v{P+3}")
        unpack(P, t, t + 1)
        for r in range(4):
            A(f"    v_mul_f32 v{P+r}, s30, v{P+r}")
        for r in range(4):
            A(f"    v_exp_f32 v{P+r}, v{P+r}")
        A("    s_nop 0")
        A(f"    v_cvt_pk_bf16_f32 v{t}, v{P}, v{P+1}")
        A(f"    v_cvt_pk_bf16_f32 v{t+1}, v{P+2}, v{P+3}")
        unpack(P, t, t + 1)
        for r in range(4):
            A(f"    v_fma_f32 v{P+r}, v{P+r}, s31, v{vC1}")
        A(f"    v_cvt_pk_bf16_f32 v{O}, v{P}, v{P+1}")
        A(f"    v_cvt_pk_bf16_f32 v{O+1}, v{P+2}, v{P+3}")

    A("    s_waitcnt vmcnt(0)")
    for h in range(2):
        scale_regs(vV + 16 * h, 16, vD)
        A("    s_nop 2")
        for t in range(4):
            c = "0" if t == 0 else vr(vP, 4)
            A(f"    v_mfma_f32_16x16x32_bf16 {vr(vP,4)}, {vr(vOm+4*t,4)}, {vr(vV+16*h+4*t,4)}, {c}")
        A(f"    v_mfma_f32_16x16x4_f32 {vr(vS,4)}, v{vHalf}, v{vD}, 0")
        A("    s_nop 7")
        A("    s_nop 7")
        feat(vP, vS, vPq + 2 * h)

    def poll_full(sneed):
        l = lab("pf"); g = lab("pg")
        A(f"{l}:")
        A(f"    ds_read_b32 v{vFl}, v{vFa}")
        A("    s_waitcnt lgkmcnt(0)")
        A(f"    v_readfirstlane_b32 s45, v{vFl}")
        A("    s_nop 1")
        A(f"    s_cmp_ge_i32 s45, {sneed}")
        A(f"    s_cbranch_scc1 {g}")
        A("    s_sub_u32 s59, s59, 1")
        A("    s_cbranch_scc1 L_done")
        if SLEEP: A(f"    s_sleep {SLEEP}")
        A(f"    s_branch {l}")
        A(f"{g}:")

    A("    s_add_u32 s12, s40, s63")
    A("    s_addc_u32 s13, s41, 0")
    A("    s_and_b32 s13, s13, 0xffff")
    A("    s_mov_b32 s14, 2048")
    A("    s_lshl_b32 s20, s25, 1")
    A("    s_add_u32 s20, s20, 1                       ; K needed: 2x+1")
    A("    s_mov_b32 s22, 0")
    A("    s_mov_b32 s23, 1                            ; epoch")
    A("L_bh:")
    for i in range(36):
        A(f"    v_mov_b32 v{vAcc+i}, 0")
    A("    s_mov_b32 s24, 16")
    A(".p2align 6")
    A("L_tile:")
    poll_full("s20")
    for u in range(2):
        for t in range(4):
            A(f"    ds_read_b128 {vr(vK+16*u+4*t,4)}, v{vKad+t} offset:{u*4096}")
    A("    s_add_u32 s21, s20, 1")
    A("    s_waitcnt lgkmcnt(0)")
    for u in range(2):
        scale_regs(vK + 16 * u, 16, vD + u)
    A("    s_nop 2")
    for u in range(2):
        for t in range(4):
            c = "0" if t == 0 else vr(vP + 4 * u, 4)
            A(f"    v_mfma_f32_16x16x32_bf16 {vr(vP+4*u,4)}, {vr(vK+16*u+4*t,4)}, {vr(vOm+4*t,4)}, {c}")
        A(f"    v_mfma_f32_16x16x4_f32 {vr(vS+4*u,4)}, v{vD+u}, v{vHalf}, 0")
    A("    s_nop 7")
    A("    s_nop 7")
    feat(vP, vS, vPhi)
    feat(vP + 4, vS + 4, vPhi + 2)
    poll_full("s21")
    for bb in range(8):
        for u in range(2):
            A(f"    ds_read_b64_tr_b16 {vr(vV+4*bb+2*u,2)}, v{vVad+bb} offset:{u*4096}")
    A("    s_add_u32 s22, s22, 1")
    A(f"    v_mov_b32 v{vFl}, s22")
    A("    s_waitcnt lgkmcnt(0)")
    A(f"    ds_write_b32 v{vX+6}, v{vFl}                ; free")
    for bb in range(8):
        A(f"    v_mfma_f32_16x16x32_bf16 {vr(vAcc+4*bb,4)}, {vr(vPhi,4)}, {vr(vV+4*bb,4)}, {vr(vAcc+4*bb,4)}")
    A(f"    v_mfma_f32_16x16x32_bf16 {vr(vZ,4)}, {vr(vPhi,4)}, {vr(vOnes,4)}, {vr(vZ,4)}")
    for t in range(4):
        A(f"    v_xor_b32 v{vKad+t}, 0x4000, v{vKad+t}")
    for b in range(8):
        A(f"    v_xor_b32 v{vVad+b}, 0x4000, v{vVad+b}")
    A("    s_add_u32 s20, s20, 8")
    A("    s_sub_u32 s24, s24, 1")
    A("    s_cmp_lg_u32 s24, 0")
    A("    s_cbranch_scc1 L_tile")

    A("    s_nop 7")
    for k in range(1, 4):
        for bb in range(2):
            A(f"    ds_write_b128 v{vX+k-1}, {vr(vAcc+8*k+4*bb,4)} offset:{bb*1024}")
    A(f"    ds_write_b128 v{vX+4}, {vr(vZ,4)}")
    A(f"    v_mov_b32 v{vFl}, s23")
    A("    s_waitcnt lgkmcnt(0)")
    A(f"    ds_write_b32 v{vX+6}, v{vFl} offset:1024")
    l = lab("pd")
    A(f"{l}:")
    A(f"    ds_read_b32 v{vFl}, v{vX+7}")
    A("    s_waitcnt lgkmcnt(0)")
    A("    s_sub_u32 s59, s59, 1")
    A("    s_cbranch_scc1 L_done")
    A(f"    v_cmp_gt_u32 vcc, s23, v{vFl}")
    A(f"    s_cbranch_vccnz {l}")
    for k in range(1, 4):
        for bb in range(2):
            A(f"    ds_read_b128 {vr(vK+8*(k-1)+4*bb,4)}, v{vX+3} offset:{(k-1)*2048+bb*1024}")
    for w in range(4):
        A(f"    ds_read_b128 {vr(vV+4*w,4)}, v{vX+5} offset:{w*1024}")
    A("    v_lshlrev_b32 v3, 8, v1                     ; j*256")
    A("    v_lshl_add_u32 v3, v2, 3, v3                ; + g*8")
    A("    s_lshl_b32 s44, s25, 6")
    A("    v_add_u32 v3, s44, v3")
    A("    s_waitcnt lgkmcnt(0)")
    for k in range(1, 4):
        for bb in range(2):
            for r in range(4):
                A(f"    v_add_f32 v{vAcc+4*bb+r}, v{vAcc+4*bb+r}, v{vK+8*(k-1)+4*bb+r}")
    for w in range(1, 4):
        for r in range(4):
            A(f"    v_add_f32 v{vV+r}, v{vV+r}, v{vV+4*w+r}")
    for bb in range(2):
        A(f"    v_cvt_pk_bf16_f32 v{vT+2*bb}, v{vAcc+4*bb}, v{vAcc+4*bb+1}")
        A(f"    v_cvt_pk_bf16_f32 v{vT+2*bb+1}, v{vAcc+4*bb+2}, v{vAcc+4*bb+3}")
    A(f"    v_cvt_pk_bf16_f32 v{vT+8}, v{vV}, v{vV+1}")
    A(f"    v_cvt_pk_bf16_f32 v{vT+9}, v{vV+2}, v{vV+3}")
    A("    s_nop 1")
    for bb in range(2):
        A(f"    v_mfma_f32_16x16x16_bf16 {vr(vAcc+4*bb,4)}, {vr(vT+2*bb,2)}, {vr(vPq,2)}, 0")
    A(f"    v_mfma_f32_16x16x16_bf16 {vr(vZ,4)}, {vr(vT+8,2)}, {vr(vPq,2)}, 0")
    A("    s_nop 7")
    A("    s_nop 1")
    A(f"    v_cvt_pk_bf16_f32 v{vT}, v{vZ}, v{vZ}")
    A(f"    v_and_b32 v{vT}, s27, v{vT}")
    A(f"    v_add_f32 v{vT}, v{vT}, v{vC1}")
    A(f"    v_cvt_pk_bf16_f32 v{vT}, v{vT}, v{vT}")
    A(f"    v_and_b32 v{vT}, s27, v{vT}               ; den")
    A(f"    v_rcp_f32 v{vT+1}, v{vT}")
    for bb in range(2):
        a = vAcc + 4 * bb
        A(f"    v_cvt_pk_bf16_f32 v{vT+2}, v{a}, v{a+1}")
        A(f"    v_cvt_pk_bf16_f32 v{vT+3}, v{a+2}, v{a+3}")
        A(f"    v_lshlrev_b32 v{a}, 16, v{vT+2}")
        A(f"    v_and_b32 v{a+1}, s27, v{vT+2}")
        A(f"    v_lshlrev_b32 v{a+2}, 16, v{vT+3}")
        A(f"    v_and_b32 v{a+3}, s27, v{vT+3}")
        for r in range(4):
            A(f"    v_mul_f32 v{vT+4+r}, v{a+r}, v{vT+1}")
        for r in range(4):
            A(f"    v_fma_f32 v{vT+8+r}, -v{vT+4+r}, v{vT}, v{a+r}")
        for r in range(4):
            A(f"    v_fma_f32 v{vT+4+r}, v{vT+8+r}, v{vT+1}, v{vT+4+r}")
        for r in range(4):
            A(f"    v_div_fixup_f32 v{vT+4+r}, v{vT+4+r}, v{vT}, v{a+r}")
        A(f"    v_cvt_pk_bf16_f32 v{a}, v{vT+4}, v{vT+5}")
        A(f"    v_cvt_pk_bf16_f32 v{a+1}, v{vT+6}, v{vT+7}")
        A(f"    buffer_store_dwordx2 {vr(a,2)}, v3, s[12:15], 0 offen offset:{bb*32}")
    A("    s_cmp_eq_u32 s23, 2")
    A("    s_cbranch_scc1 L_fin")
    A("    s_mov_b32 s23, 2")
    A("    s_add_u32 s12, s12, 2048")
    A("    s_addc_u32 s13, s13, 0")
    A(f"    v_mov_b32 v{vPq}, v{vPq+2}")
    A(f"    v_mov_b32 v{vPq+1}, v{vPq+3}")
    A("    s_branch L_bh")
    A("L_fin:")
    if STAMP:
        A("L_stamp:")
        A("    s_waitcnt vmcnt(0)")
        A("    s_memrealtime s[50:51]")
        A("    s_getreg_b32 s52, hwreg(HW_REG_XCC_ID)")
        A("    s_getreg_b32 s53, hwreg(HW_REG_HW_ID)")
        A("    s_waitcnt lgkmcnt(0)")
        A("    s_mov_b32 s44, s46")
        A("    s_and_b32 s45, s47, 0xffff")
        A("    s_mov_b32 s46, 0x100000")
        A("    s_mov_b32 s47, 0x20000")
        for i, s in enumerate((48, 49, 50, 51, 52, 53)):
            A(f"    v_mov_b32 v{40+i}, s{s}")
        A("    v_readfirstlane_b32 s55, v200") if False else None
        A(f"    s_mul_i32 s54, s2, 5")
        A("    s_add_u32 s54, s54, s58")
        A("    s_lshl_b32 s54, s54, 5")
        A("    v_mov_b32 v46, s54")
        A("    v_cmp_eq_u32 vcc, 0, v0")
        A("    s_and_saveexec_b64 s[56:57], vcc")
        A("    buffer_store_dwordx4 v[40:43], v46, s[44:47], 0 offen")
        A("    buffer_store_dwordx2 v[44:45], v46, s[44:47], 0 offen offset:16")
        A("    s_mov_b64 exec, s[56:57]")
    A("L_done:")
    A("    s_endpgm")
    A('.section .rodata,"a"')
    A(".p2align 6")
    A(".amdhsa_kernel standalone__linear_kernel_rfa__sampling_kernel")
    A(f"  .amdhsa_next_free_vgpr {NV}")
    A("  .amdhsa_next_free_sgpr 96")
    A(f"  .amdhsa_accum_offset {NV}")
    A("  .amdhsa_group_segment_fixed_size 0")
    A("  .amdhsa_kernarg_size 56")
    A("  .amdhsa_user_sgpr_count 2")
    A("  .amdhsa_user_sgpr_kernarg_segment_ptr 1")
    A("  .amdhsa_system_sgpr_workgroup_id_x 1")
    A("  .amdhsa_float_denorm_mode_32 3")
    A(".end_amdhsa_kernel")
    L2 = [x for x in L if x is not None]
    s = "\n".join(L2) + "\n"
    if STAMP:
        s = s.replace("    s_lshr_b32 s25, s25, 6                      ; wave id\n", "    s_lshr_b32 s25, s25, 6                      ; wave id\n    s_mov_b32 s58, s25\n")
    return s

if __name__ == "__main__":
    kw = {}
    out = sys.argv[1]
    for a in sys.argv[2:]:
        k, v = a.split("=")
        try: v = int(v)
        except ValueError:
            try: v = float(v)
            except ValueError: pass
        kw[k] = v
    open(out, "w").write(gen(**kw))
```

```python
import sys

def gen(DLO=18, DHI=22, DINIT=20, POL="nt", STAMP=0, SLEEP=1, PRIO=3, MIMIC=1, CTL=1, CK0=8, CKI=8, NCK=15, STATIC=0, CSLEEP=3, RMAP=0, CMODE=6, LAG=4, GAIN=2.0, DMID=20.0, WIN=400, STPOL="sc0 sc1", LDPOL="", NOST=0, NOLD=0, DBG=1, PUB=1, FIXD=0, STRIDE=128, MINC=4, NPUB=32, ROT=0, ORD=0):
    NC = 4
    SLOTB = 16384
    RING = 8 * SLOTB
    SCR = RING
    ZSC = SCR + 24576
    FLG = ZSC + 4096
    F_FULL, F_FREE, F_DONE = FLG, FLG + 256, FLG + 256 + 1024
    F_CTL = FLG + 2304
    LDS = FLG + 2304 + 256
    assert LDS <= 163840
    NT = 128
    pol = (" " + POL) if POL else ""
    L = []; A = L.append
    vKoff, vVoff, vKad, vVad = 4, 8, 10, 14
    vOm, vK, vV, vAcc, vZ = 24, 40, 72, 104, 136
    vP, vS, vT, vPhi, vPq = 140, 148, 156, 172, 176
    vHalf, vOnes, vC1, vD = 180, 184, 188, 190
    vFl, vFa = 22, 23
    vX = 192
    NV = 200
    def vr(b, n): return f"v[{b}:{b+n-1}]"
    uid = [0]
    def lab(p):
        uid[0] += 1
        return f"L_{p}{uid[0]}"

    A(f"; @launch grid=(256,1,1) block=({384 if CTL==1 else 320},1,1) lds={LDS}")
    A('.amdgcn_target "amdgcn-amd-amdhsa--gfx950"')
    A(".text")
    A(".globl standalone__linear_kernel_rfa__sampling_kernel")
    A(".p2align 8")
    A(".type standalone__linear_kernel_rfa__sampling_kernel,@function")
    A("standalone__linear_kernel_rfa__sampling_kernel:")
    A("    s_cmp_ge_u32 s2, 256")
    A("    s_cbranch_scc1 L_done")
    A("    s_load_dwordx8 s[32:39], s[0:1], 0          ; q, k, v, omega")
    A("    s_load_dwordx4 s[40:43], s[0:1], 32")
    A("    s_load_dwordx2 s[46:47], s[0:1], 48         ; ws")
    if STAMP:
        A("    s_memrealtime s[48:49]")
    A("    v_readfirstlane_b32 s25, v0")
    A("    v_and_b32 v0, 63, v0                        ; lane")
    A("    v_and_b32 v1, 15, v0                        ; j")
    A("    v_lshrrev_b32 v2, 4, v0                     ; g")
    A("    s_lshr_b32 s25, s25, 6")
    A("    s_lshl_b32 s62, s2, 20")
    A("    s_mov_b32 s59, 0x200000")
    if CTL == 1:
        A("    s_cmp_eq_u32 s25, 5")
        A("    s_cbranch_scc1 L_ctl")
    A("    s_cmp_lg_u32 s25, 0")
    A("    s_cbranch_scc1 L_consumer")

    if PRIO: A(f"    s_setprio {PRIO}")
    A("    v_xor_b32 v3, v1, v2                        ; j ^ g")
    A("    v_lshlrev_b32 v22, 8, v2                    ; g*256")
    for p in range(4):
        A(f"    v_xor_b32 v23, {4*p}, v3")
        A(f"    v_lshl_add_u32 v{vKoff+p}, v23, 4, v22")
    A("    v_lshlrev_b32 v23, 1, v2")
    A("    v_xor_b32 v3, v1, v23                       ; j ^ 2g")
    for p in range(2):
        A(f"    v_xor_b32 v23, {8*p}, v3")
        A(f"    v_lshl_add_u32 v{vVoff+p}, v23, 4, v22")
    A("    v_lshlrev_b32 v12, 2, v0                    ; lane*4")
    A(f"    v_add_u32 v12, {F_FULL}, v12")
    A("    v_mov_b32 v13, 0")
    for k in range(8):
        A(f"    ds_write_b32 v12, v13 offset:{256 + 256*k}")
    A("    v_mov_b32 v14, 0x80000000")
    A("    ds_write_b32 v12, v14")
    if STATIC == 1:
        A("    s_bfe_u32 s23, s2, 0x10003                  ; (wg>>3)&1")
        A(f"    s_mul_i32 s23, s23, {DHI-DLO}")
        A(f"    s_add_u32 s23, s23, {DLO}")
        A("    v_mov_b32 v14, s23")
    elif STATIC == 2:
        A("    s_and_b32 s23, s2, 1")
        A(f"    s_mul_i32 s23, s23, {DHI-DLO}")
        A(f"    s_add_u32 s23, s23, {DLO}")
        A("    v_mov_b32 v14, s23")
    else:
        A(f"    v_mov_b32 v14, {DINIT}")
    A(f"    ds_write_b32 v12, v14 offset:{F_CTL-F_FULL}")
    A("    v_and_b32 v15, 3, v0")
    A("    v_lshlrev_b32 v15, 8, v15")
    A(f"    v_add_u32 v15, {F_FREE}, v15")
    A(f"    v_mov_b32 v14, {F_CTL}")
    A("    v_cmp_eq_u32 vcc, 4, v0")
    A("    v_cndmask_b32 v15, v15, v14, vcc")
    A("    ds_read_b32 v16, v15")
    A("    s_waitcnt lgkmcnt(0)")
    A("    s_barrier")
    A("    s_add_u32 s4, s34, s62")
    A("    s_addc_u32 s5, s35, 0")
    A("    s_and_b32 s5, s5, 0xffff")
    A("    s_mov_b32 s6, 0x100000")
    A("    s_mov_b32 s7, 0x20000")
    A("    s_add_u32 s8, s36, s62")
    A("    s_addc_u32 s9, s37, 0")
    A("    s_and_b32 s9, s9, 0xffff")
    A("    s_mov_b32 s10, 0x100000")
    A("    s_mov_b32 s11, 0x20000")
    A("    s_mov_b32 s20, 0                            ; x (tile)")
    if ROT == 1:
        A("    s_and_b32 s19, s2, 63")
    elif ROT == 2:
        A("    s_lshr_b32 s19, s2, 2")
    elif ROT == 3:
        A("    s_mul_i32 s19, s2, 11")
    elif ROT == 4:
        A("    s_lshr_b32 s19, s2, 3")
        A("    s_lshl_b32 s19, s19, 1")
    elif ROT == 5:
        A("    s_mul_i32 s19, s2, 37")
    else:
        A("    s_mov_b32 s19, 0")
    A("    s_and_b32 s19, s19, 63")
    def emit_off():
        A("    s_add_u32 s21, s20, s19")
        A("    s_and_b32 s21, s21, 63")
        A("    s_lshl_b32 s21, s21, 1                      ; i = 2x")
        if ORD:
            A(f"    s_lshr_b32 s27, s21, {7-ORD}")
            A(f"    s_lshl_b32 s21, s21, {ORD}")
            A("    s_and_b32 s21, s21, 127")
            A("    s_or_b32 s21, s21, s27")
        A("    s_and_b32 s27, s20, 64")
        A("    s_lshl_b32 s27, s27, 1")
        A("    s_or_b32 s21, s21, s27")
        A("    s_lshl_b32 s21, s21, 12")
    A("    s_mov_b32 s20, 0")
    emit_off()
    A(f"    s_mov_b32 s22, 0x80000000")
    A(".p2align 6")
    A("L_ld:")
    A("    s_and_b32 s23, s20, 3")
    A("    s_lshl_b32 s26, s23, 15")
    A("    s_and_b32 s27, s20, 4")
    A("    s_lshl_b32 s27, s27, 12")
    A("    s_add_u32 s26, s26, s27")
    A("    s_lshr_b32 s28, s20, 2")
    A("    s_add_i32 s28, s28, -1")
    if STAMP == 2:
        A("    s_memrealtime s[60:61]")
    A("L_ld_chk:")
    A("    s_waitcnt lgkmcnt(0)")
    if STAMP == 2:
        A("    s_mov_b32 m0, s20")
        A("    s_bitcmp1_b32 s20, 6")
        A("    s_cbranch_scc1 L_st_hi")
        A("    v_writelane_b32 v17, s60, m0")
        A("    s_branch L_st_dn")
        A("L_st_hi:")
        A("    v_writelane_b32 v18, s60, m0")
        A("L_st_dn:")
    A("    v_readlane_b32 s29, v16, s23")
    A("    v_readlane_b32 s31, v16, 4")
    A(f"    s_add_u32 s30, s21, {4096 << ORD}")
    A("    s_lshl_b32 s24, s20, 1                      ; 2x")
    A("    s_nop 1")
    A("    s_cmp_ge_i32 s29, s28")
    A("    s_cbranch_scc1 L_ld_go")
    A("    s_sub_u32 s59, s59, 1")
    A("    s_cbranch_scc1 L_done")
    A("    ds_read_b32 v16, v15")
    A("    s_branch L_ld_chk")
    A("L_ld_go:")
    DS = list(range(DLO, DHI + 1))
    for D in DS[:-1]:
        A(f"    s_cmp_le_u32 s31, {D}")
        A(f"    s_cbranch_scc1 L_var{D}")
    for D in reversed(DS):
        A(f"L_var{D}:")
        i0 = (D - 1) % 8
        for i in range(16):
            half = i // 8
            srd = "s[4:7]" if half == 0 else "s[8:11]"
            if i % 4 == 0:
                A(f"    s_add_u32 m0, s26, {i*1024}")
            A(f"    s_waitcnt vmcnt({D-1})")
            if i % 8 == i0:
                c = (i - (D - 1)) // 8
                A(f"    s_add_i32 s27, s24, {c}")
                A(f"    s_max_i32 s22, s22, s27")
                A(f"    v_mov_b32 v13, s22")
                A(f"    ds_write_b32 v12, v13")
            if i == 9:
                A("    ds_read_b32 v16, v15")
            vo = (vKoff + (i & 3)) if half == 0 else (vVoff + (i & 1))
            so = "s21" if (i % 8) < 4 else "s30"
            A(f"    buffer_load_dwordx4 v{vo}, {srd}, {so} offen offset:{1024*(i&3)}{pol} lds")
        A("    s_add_u32 s20, s20, 1")
        if ROT or ORD:
            emit_off()
        else:
            A("    s_add_u32 s21, s21, 8192")
        A(f"    s_cmp_lt_u32 s20, {NT}")
        A("    s_cbranch_scc1 L_ld")
        if D != DS[0]:
            A("    s_branch L_drain")
    A("L_drain:")
    total = NT * 16
    first = 2 * NT - 1 - max(0, (DHI - 1) // 8 - 1) - 1
    for val in range(first, 2 * NT + 1):
        A(f"    s_waitcnt vmcnt({total - 8*val})")
        A(f"    s_max_i32 s22, s22, {val}")
        A(f"    v_mov_b32 v13, s22")
        A(f"    ds_write_b32 v12, v13")
    A("    s_waitcnt lgkmcnt(0)")
    if STAMP == 2:
        A("    s_mov_b32 s4, s46")
        A("    s_and_b32 s5, s47, 0xffff")
        A("    s_mov_b32 s6, 0x1000000")
        A("    s_mov_b32 s7, 0x20000")
        A("    s_lshl_b32 s20, s2, 9")
        A("    s_add_u32 s20, s20, 0x100000")
        A("    v_lshlrev_b32 v19, 2, v0")
        A("    buffer_store_dword v17, v19, s[4:7], s20 offen")
        A("    buffer_store_dword v18, v19, s[4:7], s20 offen offset:256")
    if STAMP:
        A("    s_branch L_stamp")
    else:
        A("    s_endpgm")

    if CTL == 1:
        import struct
        def f32(x): return "0x%08x" % struct.unpack("<I", struct.pack("<f", x))[0]
        def wait_full(sneed, tag):
            A(f"L_ck{tag}:")
            A("    ds_read_b32 v6, v4")
            A("    s_waitcnt lgkmcnt(0)")
            A("    v_readfirstlane_b32 s45, v6")
            A("    s_nop 1")
            A(f"    s_cmp_ge_i32 s45, {sneed}")
            A(f"    s_cbranch_scc1 L_ck{tag}_go")
            A("    s_sub_u32 s59, s59, 1")
            A("    s_cbranch_scc1 L_done")
            A(f"    s_sleep {CSLEEP}")
            A(f"    s_branch L_ck{tag}")
            A(f"L_ck{tag}_go:")
        ROWB = NPUB * STRIDE
        PSH = {64: 2, 32: 3, 16: 4, 8: 5}[NPUB]
        A("L_ctl:")
        A("    s_waitcnt lgkmcnt(0)")
        A("    s_barrier")
        A("    s_add_u32 s4, s46, 0x200000")
        A("    s_addc_u32 s5, s47, 0")
        if STAMP == 2 and DBG:
            A("    s_mov_b32 s8, s4")
            A("    s_and_b32 s9, s5, 0xffff")
            A("    s_mov_b32 s10, 0x100000")
            A("    s_mov_b32 s11, 0x20000")
        A(f"    v_mov_b32 v4, {F_FULL}")
        A(f"    v_mov_b32 v5, {F_CTL}")
        A(f"    s_lshr_b32 s26, s2, {PSH}                     ; l")
        A(f"    s_mul_i32 s33, s26, {STRIDE}")
        A(f"    s_xor_b32 s26, s26, s2")
        A(f"    s_and_b32 s32, s26, {(1 << PSH) - 1 if PSH <= 3 else 7}")
        if PSH > 3:
            A(f"    s_bfe_u32 s26, s2, {(PSH-3) << 16 | 3}")
            A("    s_or_b32 s32, s32, s26")
        A(f"    s_mov_b32 s20, {2*CK0}")
        A("    s_mov_b32 s44, 0")
        A(f"    s_mov_b32 s24, {NCK}")
        A(f"    s_mov_b32 s27, {f32(GAIN/100.0)}")
        A(f"    s_mov_b32 s28, {f32(DMID + 0.5)}")
        A(f"    s_mov_b32 s35, {2*WIN}")
        A("L_ckl:")
        wait_full("s20", "a")
        A("    s_memrealtime s[30:31]")
        A(f"    s_add_u32 s23, s20, {2*LAG}")
        A("    s_waitcnt lgkmcnt(0)")
        if not NOST:
            A("    s_cmp_lg_u32 s32, 0")
            A("    s_cbranch_scc1 L_ck_nopub")
            A("    s_mov_b32 s34, s30")
            A("    s_atomic_swap s34, s[4:5], s33")
            A("L_ck_nopub:")
        wait_full("s23", "b")
        if not NOLD:
            for l in range(NPUB):
                A(f"    s_load_dword s{64+l}, s[4:5], {l*STRIDE}")
        A(f"    s_sub_u32 s22, {WIN}, s30")
        A("    s_mov_b32 s25, 0                            ; sum")
        A("    s_mov_b32 s26, 0                            ; count")
        A("    s_waitcnt lgkmcnt(0)")
        for l in range(NPUB):
            A(f"    s_add_u32 s{64+l}, s{64+l}, s22")
            A(f"    s_cmp_lt_u32 s{64+l}, s35")
            A(f"    s_cselect_b32 s{64+l}, s{64+l}, 0")
            A(f"    s_addc_u32 s26, s26, 0")
            A(f"    s_add_u32 s25, s25, s{64+l}")
        A(f"    s_cmp_lt_u32 s26, {MINC}")
        A("    s_cbranch_scc1 L_ck_dbg")
        A(f"    s_mul_i32 s22, s26, {WIN}")
        A("    s_sub_i32 s25, s22, s25")
        A("    v_cvt_f32_i32 v10, s25")
        A("    v_cvt_f32_u32 v13, s26")
        A("    v_rcp_f32 v13, v13")
        A("    s_nop 0")
        A("    v_mul_f32 v10, v10, v13")
        A("    v_mul_f32 v10, s27, v10")
        A("    v_add_f32 v10, s28, v10")
        A("    v_cvt_i32_f32 v10, v10")
        A(f"    v_max_i32 v10, {DLO}, v10")
        A(f"    v_min_i32 v10, {DHI}, v10")
        if FIXD:
            A(f"    v_mov_b32 v10, {DINIT}")
        A("    ds_write_b32 v5, v10")
        A("L_ck_dbg:")
        if STAMP == 2 and DBG:
            A("    s_mov_b64 exec, 1")
            A("    s_lshl_b32 s25, s2, 6")
            A("    s_add_u32 s25, s25, s44")
            A("    s_add_u32 s25, s25, 0x80000")
            A("    v_mov_b32 v14, s25")
            A("    s_lshl_b32 s26, s26, 8")
            A("    v_or_b32 v13, s26, v10")
            A("    buffer_store_dword v13, v14, s[8:11], 0 offen")
            A("    s_mov_b64 exec, -1")
        A(f"    s_add_u32 s20, s20, {2*CKI}")
        A("    s_add_u32 s44, s44, 4")
        A(f"    s_add_u32 s4, s4, {ROWB}")
        A(f"    s_addc_u32 s5, s5, 0")
        A("    s_sub_u32 s24, s24, 1")
        A("    s_cmp_lg_u32 s24, 0")
        A("    s_cbranch_scc1 L_ckl")
        A("    s_waitcnt vmcnt(0) lgkmcnt(0)")
        A("    s_endpgm")

    A("L_consumer:")
    A("    s_sub_u32 s25, s25, 1                       ; c")
    A("    s_lshl_b32 s26, s25, 15")
    A("    s_lshl_b32 s63, s2, 12")
    A("    v_lshlrev_b32 v22, 4, v2                    ; g*16")
    A("    v_lshl_add_u32 v23, v1, 8, v22              ; j*256 + g*16 (omega)")
    A("    v_and_b32 v3, 7, v1")
    A("    v_lshl_add_u32 v22, v3, 8, v22              ; (j&7)*256 + g*16 (q)")
    A("    s_waitcnt lgkmcnt(0)")
    A("    s_barrier")
    A("    s_add_u32 s12, s32, s63")
    A("    s_addc_u32 s13, s33, 0")
    A("    s_and_b32 s13, s13, 0xffff")
    A("    s_mov_b32 s14, 4096")
    A("    s_mov_b32 s15, 0x20000")
    A("    s_mov_b32 s16, s38")
    A("    s_and_b32 s17, s39, 0xffff")
    A("    s_mov_b32 s18, 4096")
    A("    s_mov_b32 s19, 0x20000")
    for t in range(4):
        A(f"    buffer_load_dwordx4 {vr(vOm+4*t,4)}, v23, s[16:19], 0 offen offset:{64*t}")
    for t in range(4):
        A(f"    buffer_load_dwordx4 {vr(vV+4*t,4)}, v22, s[12:15], 0 offen offset:{64*t}")
    for t in range(4):
        A(f"    buffer_load_dwordx4 {vr(vV+16+4*t,4)}, v22, s[12:15], 0 offen offset:{2048+64*t}")
    A("    v_lshlrev_b32 v22, 8, v1                    ; j*256")
    A("    v_add_u32 v22, s26, v22")
    A("    v_xor_b32 v3, v1, v2                        ; j ^ g")
    for t in range(4):
        A(f"    v_xor_b32 v23, {4*t}, v3")
        A(f"    v_lshl_add_u32 v{vKad+t}, v23, 4, v22")
    A("    v_lshrrev_b32 v3, 2, v0                     ; 4g+r")
    A("    v_lshlrev_b32 v22, 8, v3                    ; row*256")
    A("    v_add_u32 v22, s26, v22")
    A("    v_and_b32 v23, 3, v0")
    A("    v_lshl_add_u32 v22, v23, 3, v22             ; + 8c4")
    A("    v_add_u32 v22, 8192, v22")
    A("    v_and_b32 v3, 7, v3                         ; s&7")
    A("    s_lshl_b32 s44, s25, 1                      ; 2c")
    for b in range(8):
        A(f"    s_add_u32 s45, s44, {b}")
        A(f"    s_and_b32 s45, s45, 7")
        A(f"    v_xor_b32 v23, s45, v3")
        A(f"    v_lshl_add_u32 v{vVad+b}, v23, 5, v22")
    A("    v_lshlrev_b32 v3, 4, v0                     ; lane*16")
    for k in range(1, 4):
        A(f"    s_add_u32 s45, s25, {k}")
        A(f"    s_and_b32 s45, s45, 3")
        A(f"    s_mul_i32 s45, s45, 6144")
        A(f"    s_add_u32 s45, s45, {SCR + (k-1)*2048}")
        A(f"    v_add_u32 v{vX+k-1}, s45, v3")
    A(f"    s_mul_i32 s45, s25, 6144")
    A(f"    s_add_u32 s45, s45, {SCR}")
    A(f"    v_add_u32 v{vX+3}, s45, v3")
    A(f"    s_lshl_b32 s45, s25, 10")
    A(f"    s_add_u32 s45, s45, {ZSC}")
    A(f"    v_add_u32 v{vX+4}, s45, v3")
    A(f"    v_add_u32 v{vX+5}, {ZSC}, v3")
    A("    v_lshlrev_b32 v3, 2, v0")
    A("    s_lshl_b32 s45, s25, 8")
    A(f"    s_add_u32 s45, s45, {F_FREE}")
    A(f"    v_add_u32 v{vX+6}, s45, v3")
    A("    v_and_b32 v3, 3, v0")
    A("    v_lshlrev_b32 v3, 8, v3")
    A(f"    v_add_u32 v{vX+7}, {F_DONE}, v3")
    A(f"    v_mov_b32 v{vFa}, {F_FULL}")
    A("    s_mov_b32 s27, 0xffff0000")
    A("    s_mov_b32 s28, 0x3e9837f0                   ; 128^-0.25 (f32)")
    A("    s_mov_b32 s29, 0x3e9837f0")
    A("    s_mov_b32 s30, 0x3fb8aa3b                   ; log2(e)")
    A("    s_mov_b32 s31, 0x3e800000                   ; 0.25")
    A(f"    v_mov_b32 v{vHalf}, 0.5")
    for i in range(4):
        A(f"    v_mov_b32 v{vOnes+i}, 0x3f803f80")
    A(f"    v_mov_b32 v{vC1}, 0x358637bd               ; 1e-6")

    def scale_regs(base, n, dacc):
        for i in range(n):
            t = vT + 2 * (i % 4)
            A(f"    v_lshlrev_b32 v{t}, 16, v{base+i}")
            A(f"    v_and_b32 v{t+1}, s27, v{base+i}")
            A(f"    v_pk_mul_f32 {vr(t,2)}, {vr(t,2)}, s[28:29]")
            A(f"    v_cvt_pk_bf16_f32 v{base+i}, v{t}, v{t+1}")
            if i == 0:
                A(f"    v_dot2_f32_bf16 v{dacc}, v{base+i}, v{base+i}, 0")
            else:
                A(f"    v_dot2_f32_bf16 v{dacc}, v{base+i}, v{base+i}, v{dacc}")

    def feat(P, S, O):
        t = vT + 8
        A(f"    v_cvt_pk_bf16_f32 v{t}, v{P}, v{P+1}")
        A(f"    v_cvt_pk_bf16_f32 v{t+1}, v{P+2}, v{P+3}")
        A(f"    v_cvt_pk_bf16_f32 v{t+2}, v{S}, v{S+1}")
        A(f"    v_cvt_pk_bf16_f32 v{t+3}, v{S+2}, v{S+3}")
        def unpack(dst, src0, src1):
            A(f"    v_lshlrev_b32 v{dst}, 16, v{src0}")
            A(f"    v_and_b32 v{dst+1}, s27, v{src0}")
            A(f"    v_lshlrev_b32 v{dst+2}, 16, v{src1}")
            A(f"    v_and_b32 v{dst+3}, s27, v{src1}")
        unpack(P, t, t + 1)
        unpack(S, t + 2, t + 3)
        for r in range(4):
            A(f"    v_sub_f32 v{P+r}, v{P+r}, v{S+r}")
        A(f"    v_cvt_pk_bf16_f32 v{t}, v{P}, v{P+1}")
        A(f"    v_cvt_pk_bf16_f32 v{t+1}, v{P+2}, v{P+3}")
        unpack(P, t, t + 1)
        for r in range(4):
            A(f"    v_mul_f32 v{P+r}, s30, v{P+r}")
        for r in range(4):
            A(f"    v_exp_f32 v{P+r}, v{P+r}")
        A("    s_nop 0")
        A(f"    v_cvt_pk_bf16_f32 v{t}, v{P}, v{P+1}")
        A(f"    v_cvt_pk_bf16_f32 v{t+1}, v{P+2}, v{P+3}")
        unpack(P, t, t + 1)
        for r in range(4):
            A(f"    v_fma_f32 v{P+r}, v{P+r}, s31, v{vC1}")
        A(f"    v_cvt_pk_bf16_f32 v{O}, v{P}, v{P+1}")
        A(f"    v_cvt_pk_bf16_f32 v{O+1}, v{P+2}, v{P+3}")

    A("    s_waitcnt vmcnt(0)")
    for h in range(2):
        scale_regs(vV + 16 * h, 16, vD)
        A("    s_nop 2")
        for t in range(4):
            c = "0" if t == 0 else vr(vP, 4)
            A(f"    v_mfma_f32_16x16x32_bf16 {vr(vP,4)}, {vr(vOm+4*t,4)}, {vr(vV+16*h+4*t,4)}, {c}")
        A(f"    v_mfma_f32_16x16x4_f32 {vr(vS,4)}, v{vHalf}, v{vD}, 0")
        A("    s_nop 7")
        A("    s_nop 7")
        feat(vP, vS, vPq + 2 * h)

    def poll_full(sneed):
        l = lab("pf"); g = lab("pg")
        A(f"{l}:")
        A(f"    ds_read_b32 v{vFl}, v{vFa}")
        A("    s_waitcnt lgkmcnt(0)")
        A(f"    v_readfirstlane_b32 s45, v{vFl}")
        A("    s_nop 1")
        A(f"    s_cmp_ge_i32 s45, {sneed}")
        A(f"    s_cbranch_scc1 {g}")
        A("    s_sub_u32 s59, s59, 1")
        A("    s_cbranch_scc1 L_done")
        if SLEEP: A(f"    s_sleep {SLEEP}")
        A(f"    s_branch {l}")
        A(f"{g}:")

    A("    s_add_u32 s12, s40, s63")
    A("    s_addc_u32 s13, s41, 0")
    A("    s_and_b32 s13, s13, 0xffff")
    A("    s_mov_b32 s14, 2048")
    A("    s_lshl_b32 s20, s25, 1")
    A("    s_add_u32 s20, s20, 1                       ; K needed: 2x+1")
    A("    s_mov_b32 s22, 0")
    A("    s_mov_b32 s23, 1                            ; epoch")
    A("L_bh:")
    for i in range(36):
        A(f"    v_mov_b32 v{vAcc+i}, 0")
    A("    s_mov_b32 s24, 16")
    A(".p2align 6")
    A("L_tile:")
    poll_full("s20")
    for u in range(2):
        for t in range(4):
            A(f"    ds_read_b128 {vr(vK+16*u+4*t,4)}, v{vKad+t} offset:{u*4096}")
    A("    s_add_u32 s21, s20, 1")
    A("    s_waitcnt lgkmcnt(0)")
    for u in range(2):
        scale_regs(vK + 16 * u, 16, vD + u)
    A("    s_nop 2")
    for u in range(2):
        for t in range(4):
            c = "0" if t == 0 else vr(vP + 4 * u, 4)
            A(f"    v_mfma_f32_16x16x32_bf16 {vr(vP+4*u,4)}, {vr(vK+16*u+4*t,4)}, {vr(vOm+4*t,4)}, {c}")
        A(f"    v_mfma_f32_16x16x4_f32 {vr(vS+4*u,4)}, v{vD+u}, v{vHalf}, 0")
    A("    s_nop 7")
    A("    s_nop 7")
    feat(vP, vS, vPhi)
    feat(vP + 4, vS + 4, vPhi + 2)
    poll_full("s21")
    for bb in range(8):
        for u in range(2):
            A(f"    ds_read_b64_tr_b16 {vr(vV+4*bb+2*u,2)}, v{vVad+bb} offset:{u*4096}")
    A("    s_add_u32 s22, s22, 1")
    A(f"    v_mov_b32 v{vFl}, s22")
    A("    s_waitcnt lgkmcnt(0)")
    A(f"    ds_write_b32 v{vX+6}, v{vFl}                ; free")
    for bb in range(8):
        A(f"    v_mfma_f32_16x16x32_bf16 {vr(vAcc+4*bb,4)}, {vr(vPhi,4)}, {vr(vV+4*bb,4)}, {vr(vAcc+4*bb,4)}")
    A(f"    v_mfma_f32_16x16x32_bf16 {vr(vZ,4)}, {vr(vPhi,4)}, {vr(vOnes,4)}, {vr(vZ,4)}")
    for t in range(4):
        A(f"    v_xor_b32 v{vKad+t}, 0x4000, v{vKad+t}")
    for b in range(8):
        A(f"    v_xor_b32 v{vVad+b}, 0x4000, v{vVad+b}")
    A("    s_add_u32 s20, s20, 8")
    A("    s_sub_u32 s24, s24, 1")
    A("    s_cmp_lg_u32 s24, 0")
    A("    s_cbranch_scc1 L_tile")

    A("    s_nop 7")
    for k in range(1, 4):
        for bb in range(2):
            A(f"    ds_write_b128 v{vX+k-1}, {vr(vAcc+8*k+4*bb,4)} offset:{bb*1024}")
    A(f"    ds_write_b128 v{vX+4}, {vr(vZ,4)}")
    A(f"    v_mov_b32 v{vFl}, s23")
    A("    s_waitcnt lgkmcnt(0)")
    A(f"    ds_write_b32 v{vX+6}, v{vFl} offset:1024")
    l = lab("pd")
    A(f"{l}:")
    A(f"    ds_read_b32 v{vFl}, v{vX+7}")
    A("    s_waitcnt lgkmcnt(0)")
    A("    s_sub_u32 s59, s59, 1")
    A("    s_cbranch_scc1 L_done")
    A(f"    v_cmp_gt_u32 vcc, s23, v{vFl}")
    A(f"    s_cbranch_vccnz {l}")
    for k in range(1, 4):
        for bb in range(2):
            A(f"    ds_read_b128 {vr(vK+8*(k-1)+4*bb,4)}, v{vX+3} offset:{(k-1)*2048+bb*1024}")
    for w in range(4):
        A(f"    ds_read_b128 {vr(vV+4*w,4)}, v{vX+5} offset:{w*1024}")
    A("    v_lshlrev_b32 v3, 8, v1                     ; j*256")
    A("    v_lshl_add_u32 v3, v2, 3, v3                ; + g*8")
    A("    s_lshl_b32 s44, s25, 6")
    A("    v_add_u32 v3, s44, v3")
    A("    s_waitcnt lgkmcnt(0)")
    for k in range(1, 4):
        for bb in range(2):
            for r in range(4):
                A(f"    v_add_f32 v{vAcc+4*bb+r}, v{vAcc+4*bb+r}, v{vK+8*(k-1)+4*bb+r}")
    for w in range(1, 4):
        for r in range(4):
            A(f"    v_add_f32 v{vV+r}, v{vV+r}, v{vV+4*w+r}")
    for bb in range(2):
        A(f"    v_cvt_pk_bf16_f32 v{vT+2*bb}, v{vAcc+4*bb}, v{vAcc+4*bb+1}")
        A(f"    v_cvt_pk_bf16_f32 v{vT+2*bb+1}, v{vAcc+4*bb+2}, v{vAcc+4*bb+3}")
    A(f"    v_cvt_pk_bf16_f32 v{vT+8}, v{vV}, v{vV+1}")
    A(f"    v_cvt_pk_bf16_f32 v{vT+9}, v{vV+2}, v{vV+3}")
    A("    s_nop 1")
    for bb in range(2):
        A(f"    v_mfma_f32_16x16x16_bf16 {vr(vAcc+4*bb,4)}, {vr(vT+2*bb,2)}, {vr(vPq,2)}, 0")
    A(f"    v_mfma_f32_16x16x16_bf16 {vr(vZ,4)}, {vr(vT+8,2)}, {vr(vPq,2)}, 0")
    A("    s_nop 7")
    A("    s_nop 1")
    A(f"    v_cvt_pk_bf16_f32 v{vT}, v{vZ}, v{vZ}")
    A(f"    v_and_b32 v{vT}, s27, v{vT}")
    A(f"    v_add_f32 v{vT}, v{vT}, v{vC1}")
    A(f"    v_cvt_pk_bf16_f32 v{vT}, v{vT}, v{vT}")
    A(f"    v_and_b32 v{vT}, s27, v{vT}               ; den")
    A(f"    v_rcp_f32 v{vT+1}, v{vT}")
    for bb in range(2):
        a = vAcc + 4 * bb
        A(f"    v_cvt_pk_bf16_f32 v{vT+2}, v{a}, v{a+1}")
        A(f"    v_cvt_pk_bf16_f32 v{vT+3}, v{a+2}, v{a+3}")
        A(f"    v_lshlrev_b32 v{a}, 16, v{vT+2}")
        A(f"    v_and_b32 v{a+1}, s27, v{vT+2}")
        A(f"    v_lshlrev_b32 v{a+2}, 16, v{vT+3}")
        A(f"    v_and_b32 v{a+3}, s27, v{vT+3}")
        for r in range(4):
            A(f"    v_mul_f32 v{vT+4+r}, v{a+r}, v{vT+1}")
        for r in range(4):
            A(f"    v_fma_f32 v{vT+8+r}, -v{vT+4+r}, v{vT}, v{a+r}")
        for r in range(4):
            A(f"    v_fma_f32 v{vT+4+r}, v{vT+8+r}, v{vT+1}, v{vT+4+r}")
        for r in range(4):
            A(f"    v_div_fixup_f32 v{vT+4+r}, v{vT+4+r}, v{vT}, v{a+r}")
        A(f"    v_cvt_pk_bf16_f32 v{a}, v{vT+4}, v{vT+5}")
        A(f"    v_cvt_pk_bf16_f32 v{a+1}, v{vT+6}, v{vT+7}")
        A(f"    buffer_store_dwordx2 {vr(a,2)}, v3, s[12:15], 0 offen offset:{bb*32}")
    A("    s_cmp_eq_u32 s23, 2")
    A("    s_cbranch_scc1 L_fin")
    A("    s_mov_b32 s23, 2")
    A("    s_add_u32 s12, s12, 2048")
    A("    s_addc_u32 s13, s13, 0")
    A(f"    v_mov_b32 v{vPq}, v{vPq+2}")
    A(f"    v_mov_b32 v{vPq+1}, v{vPq+3}")
    A("    s_branch L_bh")
    A("L_fin:")
    if STAMP:
        A("L_stamp:")
        A("    s_waitcnt vmcnt(0)")
        A("    s_memrealtime s[50:51]")
        A("    s_getreg_b32 s52, hwreg(HW_REG_XCC_ID)")
        A("    s_getreg_b32 s53, hwreg(HW_REG_HW_ID)")
        A("    s_waitcnt lgkmcnt(0)")
        A("    s_mov_b32 s44, s46")
        A("    s_and_b32 s45, s47, 0xffff")
        A("    s_mov_b32 s46, 0x100000")
        A("    s_mov_b32 s47, 0x20000")
        for i, s in enumerate((48, 49, 50, 51, 52, 53)):
            A(f"    v_mov_b32 v{40+i}, s{s}")
        A("    v_readfirstlane_b32 s55, v200") if False else None
        A(f"    s_mul_i32 s54, s2, 5")
        A("    s_add_u32 s54, s54, s58")
        A("    s_lshl_b32 s54, s54, 5")
        A("    v_mov_b32 v46, s54")
        A("    v_cmp_eq_u32 vcc, 0, v0")
        A("    s_and_saveexec_b64 s[56:57], vcc")
        A("    buffer_store_dwordx4 v[40:43], v46, s[44:47], 0 offen")
        A("    buffer_store_dwordx2 v[44:45], v46, s[44:47], 0 offen offset:16")
        A("    s_mov_b64 exec, s[56:57]")
    A("L_done:")
    A("    s_endpgm")
    A('.section .rodata,"a"')
    A(".p2align 6")
    A(".amdhsa_kernel standalone__linear_kernel_rfa__sampling_kernel")
    A(f"  .amdhsa_next_free_vgpr {NV}")
    A("  .amdhsa_next_free_sgpr 96")
    A(f"  .amdhsa_accum_offset {NV}")
    A("  .amdhsa_group_segment_fixed_size 0")
    A("  .amdhsa_kernarg_size 56")
    A("  .amdhsa_user_sgpr_count 2")
    A("  .amdhsa_user_sgpr_kernarg_segment_ptr 1")
    A("  .amdhsa_system_sgpr_workgroup_id_x 1")
    A("  .amdhsa_float_denorm_mode_32 3")
    A(".end_amdhsa_kernel")
    L2 = [x for x in L if x is not None]
    s = "\n".join(L2) + "\n"
    if STAMP:
        s = s.replace("    s_lshr_b32 s25, s25, 6                      ; wave id\n", "    s_lshr_b32 s25, s25, 6                      ; wave id\n    s_mov_b32 s58, s25\n")
    return s

if __name__ == "__main__":
    kw = {}
    out = sys.argv[1]
    for a in sys.argv[2:]:
        k, v = a.split("=")
        try: v = int(v)
        except ValueError:
            try: v = float(v)
            except ValueError: pass
        kw[k] = v
    open(out, "w").write(gen(**kw))
```

```python
import sys

def gen(DLO=18, DHI=22, DINIT=20, POL="nt", STAMP=0, SLEEP=1, PRIO=3, MIMIC=1, CTL=1, CK0=8, CKI=8, NCK=15, STATIC=0, CSLEEP=3, RMAP=0, CMODE=6, LAG=4, GAIN=2.0, DMID=20.0, WIN=400, STPOL="sc0 sc1", LDPOL="", NOST=0, NOLD=0, DBG=1, PUB=1, FIXD=0, STRIDE=128, MINC=4, NPUB=32, ROT=0, ORD=0, PAT=1):
    NC = 4
    SLOTB = 16384
    RING = 8 * SLOTB
    SCR = RING
    ZSC = SCR + 24576
    FLG = ZSC + 4096
    F_FULL, F_FREE, F_DONE = FLG, FLG + 256, FLG + 256 + 1024
    F_CTL = FLG + 2304
    LDS = FLG + 2304 + 256
    assert LDS <= 163840
    NT = 128
    pol = (" " + POL) if POL else ""
    L = []; A = L.append
    vKoff, vVoff, vKad, vVad = 4, 8, 10, 14
    vOm, vK, vV, vAcc, vZ = 24, 40, 72, 104, 136
    vP, vS, vT, vPhi, vPq = 140, 148, 156, 172, 176
    vHalf, vOnes, vC1, vD = 180, 184, 188, 190
    vFl, vFa = 22, 23
    vX = 192
    NV = 200
    def vr(b, n): return f"v[{b}:{b+n-1}]"
    uid = [0]
    def lab(p):
        uid[0] += 1
        return f"L_{p}{uid[0]}"

    A(f"; @launch grid=(256,1,1) block=({384 if CTL==1 else 320},1,1) lds={LDS}")
    A('.amdgcn_target "amdgcn-amd-amdhsa--gfx950"')
    A(".text")
    A(".globl standalone__linear_kernel_rfa__sampling_kernel")
    A(".p2align 8")
    A(".type standalone__linear_kernel_rfa__sampling_kernel,@function")
    A("standalone__linear_kernel_rfa__sampling_kernel:")
    A("    s_cmp_ge_u32 s2, 256")
    A("    s_cbranch_scc1 L_done")
    A("    s_load_dwordx8 s[32:39], s[0:1], 0          ; q, k, v, omega")
    A("    s_load_dwordx4 s[40:43], s[0:1], 32")
    A("    s_load_dwordx2 s[46:47], s[0:1], 48         ; ws")
    if STAMP:
        A("    s_memrealtime s[48:49]")
    A("    v_readfirstlane_b32 s25, v0")
    A("    v_and_b32 v0, 63, v0                        ; lane")
    A("    v_and_b32 v1, 15, v0                        ; j")
    A("    v_lshrrev_b32 v2, 4, v0                     ; g")
    A("    s_lshr_b32 s25, s25, 6")
    A("    s_lshl_b32 s62, s2, 20")
    A("    s_mov_b32 s59, 0x200000")
    if CTL == 1:
        A("    s_cmp_eq_u32 s25, 5")
        A("    s_cbranch_scc1 L_ctl")
    A("    s_cmp_lg_u32 s25, 0")
    A("    s_cbranch_scc1 L_consumer")

    if PRIO: A(f"    s_setprio {PRIO}")
    GSH = {0: 8, 1: 8, 2: 8, 3: 12, 4: 13}[PAT]
    A("    v_xor_b32 v3, v1, v2                        ; j ^ g")
    A(f"    v_lshlrev_b32 v22, {GSH}, v2")
    for p in range(4):
        A(f"    v_xor_b32 v23, {4*p}, v3")
        A(f"    v_lshl_add_u32 v{vKoff+p}, v23, 4, v22")
    A("    v_lshlrev_b32 v23, 1, v2")
    A("    v_xor_b32 v3, v1, v23                       ; j ^ 2g")
    for p in range(2):
        A(f"    v_xor_b32 v23, {8*p}, v3")
        A(f"    v_lshl_add_u32 v{vVoff+p}, v23, 4, v22")
    A("    v_lshlrev_b32 v12, 2, v0                    ; lane*4")
    A(f"    v_add_u32 v12, {F_FULL}, v12")
    A("    v_mov_b32 v13, 0")
    for k in range(8):
        A(f"    ds_write_b32 v12, v13 offset:{256 + 256*k}")
    A("    v_mov_b32 v14, 0x80000000")
    A("    ds_write_b32 v12, v14")
    if STATIC == 1:
        A("    s_bfe_u32 s23, s2, 0x10003                  ; (wg>>3)&1")
        A(f"    s_mul_i32 s23, s23, {DHI-DLO}")
        A(f"    s_add_u32 s23, s23, {DLO}")
        A("    v_mov_b32 v14, s23")
    elif STATIC == 2:
        A("    s_and_b32 s23, s2, 1")
        A(f"    s_mul_i32 s23, s23, {DHI-DLO}")
        A(f"    s_add_u32 s23, s23, {DLO}")
        A("    v_mov_b32 v14, s23")
    else:
        A(f"    v_mov_b32 v14, {DINIT}")
    A(f"    ds_write_b32 v12, v14 offset:{F_CTL-F_FULL}")
    A("    v_and_b32 v15, 3, v0")
    A("    v_lshlrev_b32 v15, 8, v15")
    A(f"    v_add_u32 v15, {F_FREE}, v15")
    A(f"    v_mov_b32 v14, {F_CTL}")
    A("    v_cmp_eq_u32 vcc, 4, v0")
    A("    v_cndmask_b32 v15, v15, v14, vcc")
    A("    ds_read_b32 v16, v15")
    A("    s_waitcnt lgkmcnt(0)")
    A("    s_barrier")
    A("    s_add_u32 s4, s34, s62")
    A("    s_addc_u32 s5, s35, 0")
    A("    s_and_b32 s5, s5, 0xffff")
    A("    s_mov_b32 s6, 0x100000")
    A("    s_mov_b32 s7, 0x20000")
    A("    s_add_u32 s8, s36, s62")
    A("    s_addc_u32 s9, s37, 0")
    A("    s_and_b32 s9, s9, 0xffff")
    A("    s_mov_b32 s10, 0x100000")
    A("    s_mov_b32 s11, 0x20000")
    A("    s_mov_b32 s20, 0                            ; x (tile)")
    def offj(j):
        if PAT == 0: return (j >> 2) * 4096 + (j & 3) * 1024
        if PAT == 1: return (j & 7) * 4096 + (j >> 3) * 1024
        if PAT == 2: return (j & 7) * 4096 + (((j >> 3) + (j & 7)) & 3) * 1024
        if PAT == 3: return (j & 1) * 16384 + (j >> 1) * 256
        if PAT == 4: return (j & 1) * 4096 + (j >> 1) * 256
    assert sorted(offj(j) + (g << GSH) for j in range(32) for g in range(4)) == [256 * r for r in range(128)]
    NS = NT // 4
    if ROT == 2:
        A("    s_lshr_b32 s19, s2, 4")
    elif ROT == 8:
        A("    s_lshr_b32 s19, s2, 3")
    else:
        A("    s_mov_b32 s19, 0")
    A("    s_and_b32 s19, s19, 15")
    def emit_off():
        A("    s_add_u32 s21, s20, s19")
        A("    s_and_b32 s21, s21, 15")
        A("    s_and_b32 s27, s20, 16")
        A("    s_or_b32 s21, s21, s27")
        A("    s_lshl_b32 s21, s21, 15")
    A("    s_mov_b32 s20, 0")
    emit_off()
    A(f"    s_mov_b32 s22, 0x80000000")
    A(".p2align 6")
    A("L_ld:")
    A("    s_and_b32 s26, s20, 1")
    A("    s_lshl_b32 s26, s26, 14")
    A("    s_add_i32 s28, s20, -1")
    if STAMP == 2:
        A("    s_memrealtime s[60:61]")
    A("L_ld_chk:")
    A("    s_waitcnt lgkmcnt(0)")
    if STAMP == 2:
        A("    s_lshl_b32 m0, s20, 2")
        A("    s_bitcmp1_b32 s20, 4")
        A("    s_cbranch_scc1 L_st_hi")
        A("    v_writelane_b32 v17, s60, m0")
        A("    s_branch L_st_dn")
        A("L_st_hi:")
        A("    v_writelane_b32 v18, s60, m0")
        A("L_st_dn:")
    A("    v_cmp_gt_i32 vcc, s28, v16")
    A("    v_readlane_b32 s31, v16, 4")
    A("    s_lshl_b32 s24, s20, 1                      ; 2s")
    A("    s_nop 1")
    A("    s_and_b32 s27, vcc_lo, 15")
    A("    s_cbranch_scc0 L_ld_go")
    A("    s_sub_u32 s59, s59, 1")
    A("    s_cbranch_scc1 L_done")
    A("    ds_read_b32 v16, v15")
    A("    s_branch L_ld_chk")
    A("L_ld_go:")
    DS = list(range(DLO, DHI + 1))
    assert DHI <= 32
    for D in DS[:-1]:
        A(f"    s_cmp_le_u32 s31, {D}")
        A(f"    s_cbranch_scc1 L_var{D}")
    for D in reversed(DS):
        A(f"L_var{D}:")
        for jj in range(64):
            half = jj // 32; j = jj % 32
            srd = "s[4:7]" if half == 0 else "s[8:11]"
            t = j >> 3; u = (j >> 2) & 1; i = j & 3
            A(f"    s_add_u32 m0, s26, {t*32768 + half*8192 + u*4096 + i*1024}")
            A(f"    s_add_u32 s30, s21, {offj(j)}")
            A(f"    s_waitcnt vmcnt({D-1})")
            if jj % 32 == (D - 1) % 32:
                c = (jj - (D - 1)) // 32
                A(f"    s_add_i32 s27, s24, {c}")
                A(f"    s_max_i32 s22, s22, s27")
                A(f"    v_mov_b32 v13, s22")
                A(f"    ds_write_b32 v12, v13")
            if jj == 56:
                A("    ds_read_b32 v16, v15")
            vo = (vKoff + i) if half == 0 else (vVoff + (i & 1))
            A(f"    buffer_load_dwordx4 v{vo}, {srd}, s30 offen{pol} lds")
        A("    s_add_u32 s20, s20, 1")
        emit_off()
        A(f"    s_cmp_lt_u32 s20, {NS}")
        A("    s_cbranch_scc1 L_ld")
        if D != DS[0]:
            A("    s_branch L_drain")
    A("L_drain:")
    for val in (2 * NS - 1, 2 * NS):
        A(f"    s_waitcnt vmcnt({NS*64 - 32*val})")
        A(f"    s_max_i32 s22, s22, {val}")
        A(f"    v_mov_b32 v13, s22")
        A(f"    ds_write_b32 v12, v13")
    A("    s_waitcnt lgkmcnt(0)")
    if STAMP == 2:
        A("    s_mov_b32 s4, s46")
        A("    s_and_b32 s5, s47, 0xffff")
        A("    s_mov_b32 s6, 0x1000000")
        A("    s_mov_b32 s7, 0x20000")
        A("    s_lshl_b32 s20, s2, 9")
        A("    s_add_u32 s20, s20, 0x100000")
        A("    v_lshlrev_b32 v19, 2, v0")
        A("    buffer_store_dword v17, v19, s[4:7], s20 offen")
        A("    buffer_store_dword v18, v19, s[4:7], s20 offen offset:256")
    if STAMP:
        A("    s_branch L_stamp")
    else:
        A("    s_endpgm")

    if CTL == 1:
        import struct
        def f32(x): return "0x%08x" % struct.unpack("<I", struct.pack("<f", x))[0]
        def wait_full(sneed, tag):
            A(f"L_ck{tag}:")
            A("    ds_read_b32 v6, v4")
            A("    s_waitcnt lgkmcnt(0)")
            A("    v_readfirstlane_b32 s45, v6")
            A("    s_nop 1")
            A(f"    s_cmp_ge_i32 s45, {sneed}")
            A(f"    s_cbranch_scc1 L_ck{tag}_go")
            A("    s_sub_u32 s59, s59, 1")
            A("    s_cbranch_scc1 L_done")
            A(f"    s_sleep {CSLEEP}")
            A(f"    s_branch L_ck{tag}")
            A(f"L_ck{tag}_go:")
        ROWB = NPUB * STRIDE
        PSH = {64: 2, 32: 3, 16: 4, 8: 5}[NPUB]
        A("L_ctl:")
        A("    s_waitcnt lgkmcnt(0)")
        A("    s_barrier")
        A("    s_add_u32 s4, s46, 0x200000")
        A("    s_addc_u32 s5, s47, 0")
        if STAMP == 2 and DBG:
            A("    s_mov_b32 s8, s4")
            A("    s_and_b32 s9, s5, 0xffff")
            A("    s_mov_b32 s10, 0x100000")
            A("    s_mov_b32 s11, 0x20000")
        A(f"    v_mov_b32 v4, {F_FULL}")
        A(f"    v_mov_b32 v5, {F_CTL}")
        A(f"    s_lshr_b32 s26, s2, {PSH}                     ; l")
        A(f"    s_mul_i32 s33, s26, {STRIDE}")
        A(f"    s_xor_b32 s26, s26, s2")
        A(f"    s_and_b32 s32, s26, {(1 << PSH) - 1 if PSH <= 3 else 7}")
        if PSH > 3:
            A(f"    s_bfe_u32 s26, s2, {(PSH-3) << 16 | 3}")
            A("    s_or_b32 s32, s32, s26")
        A(f"    s_mov_b32 s20, {CK0//2}")
        A("    s_mov_b32 s44, 0")
        A(f"    s_mov_b32 s24, {NCK}")
        A(f"    s_mov_b32 s27, {f32(GAIN/100.0)}")
        A(f"    s_mov_b32 s28, {f32(DMID + 0.5)}")
        A(f"    s_mov_b32 s35, {2*WIN}")
        A("L_ckl:")
        wait_full("s20", "a")
        A("    s_memrealtime s[30:31]")
        A(f"    s_add_u32 s23, s20, {LAG//2}")
        A("    s_waitcnt lgkmcnt(0)")
        if not NOST:
            A("    s_cmp_lg_u32 s32, 0")
            A("    s_cbranch_scc1 L_ck_nopub")
            A("    s_mov_b32 s34, s30")
            A("    s_atomic_swap s34, s[4:5], s33")
            A("L_ck_nopub:")
        wait_full("s23", "b")
        if not NOLD:
            for l in range(NPUB):
                A(f"    s_load_dword s{64+l}, s[4:5], {l*STRIDE}")
        A(f"    s_sub_u32 s22, {WIN}, s30")
        A("    s_mov_b32 s25, 0                            ; sum")
        A("    s_mov_b32 s26, 0                            ; count")
        A("    s_waitcnt lgkmcnt(0)")
        for l in range(NPUB):
            A(f"    s_add_u32 s{64+l}, s{64+l}, s22")
            A(f"    s_cmp_lt_u32 s{64+l}, s35")
            A(f"    s_cselect_b32 s{64+l}, s{64+l}, 0")
            A(f"    s_addc_u32 s26, s26, 0")
            A(f"    s_add_u32 s25, s25, s{64+l}")
        A(f"    s_cmp_lt_u32 s26, {MINC}")
        A("    s_cbranch_scc1 L_ck_dbg")
        A(f"    s_mul_i32 s22, s26, {WIN}")
        A("    s_sub_i32 s25, s22, s25")
        A("    v_cvt_f32_i32 v10, s25")
        A("    v_cvt_f32_u32 v13, s26")
        A("    v_rcp_f32 v13, v13")
        A("    s_nop 0")
        A("    v_mul_f32 v10, v10, v13")
        A("    v_mul_f32 v10, s27, v10")
        A("    v_add_f32 v10, s28, v10")
        A("    v_cvt_i32_f32 v10, v10")
        A(f"    v_max_i32 v10, {DLO}, v10")
        A(f"    v_min_i32 v10, {DHI}, v10")
        if FIXD:
            A(f"    v_mov_b32 v10, {DINIT}")
        A("    ds_write_b32 v5, v10")
        A("L_ck_dbg:")
        if STAMP == 2 and DBG:
            A("    s_mov_b64 exec, 1")
            A("    s_lshl_b32 s25, s2, 6")
            A("    s_add_u32 s25, s25, s44")
            A("    s_add_u32 s25, s25, 0x80000")
            A("    v_mov_b32 v14, s25")
            A("    s_lshl_b32 s26, s26, 8")
            A("    v_or_b32 v13, s26, v10")
            A("    buffer_store_dword v13, v14, s[8:11], 0 offen")
            A("    s_mov_b64 exec, -1")
        A(f"    s_add_u32 s20, s20, {CKI//2}")
        A("    s_add_u32 s44, s44, 4")
        A(f"    s_add_u32 s4, s4, {ROWB}")
        A(f"    s_addc_u32 s5, s5, 0")
        A("    s_sub_u32 s24, s24, 1")
        A("    s_cmp_lg_u32 s24, 0")
        A("    s_cbranch_scc1 L_ckl")
        A("    s_waitcnt vmcnt(0) lgkmcnt(0)")
        A("    s_endpgm")

    A("L_consumer:")
    A("    s_sub_u32 s25, s25, 1                       ; c")
    A("    s_lshl_b32 s26, s25, 15")
    A("    s_lshl_b32 s63, s2, 12")
    A("    v_lshlrev_b32 v22, 4, v2                    ; g*16")
    A("    v_lshl_add_u32 v23, v1, 8, v22              ; j*256 + g*16 (omega)")
    A("    v_and_b32 v3, 7, v1")
    A("    v_lshl_add_u32 v22, v3, 8, v22              ; (j&7)*256 + g*16 (q)")
    A("    s_waitcnt lgkmcnt(0)")
    A("    s_barrier")
    A("    s_add_u32 s12, s32, s63")
    A("    s_addc_u32 s13, s33, 0")
    A("    s_and_b32 s13, s13, 0xffff")
    A("    s_mov_b32 s14, 4096")
    A("    s_mov_b32 s15, 0x20000")
    A("    s_mov_b32 s16, s38")
    A("    s_and_b32 s17, s39, 0xffff")
    A("    s_mov_b32 s18, 4096")
    A("    s_mov_b32 s19, 0x20000")
    for t in range(4):
        A(f"    buffer_load_dwordx4 {vr(vOm+4*t,4)}, v23, s[16:19], 0 offen offset:{64*t}")
    for t in range(4):
        A(f"    buffer_load_dwordx4 {vr(vV+4*t,4)}, v22, s[12:15], 0 offen offset:{64*t}")
    for t in range(4):
        A(f"    buffer_load_dwordx4 {vr(vV+16+4*t,4)}, v22, s[12:15], 0 offen offset:{2048+64*t}")
    A("    v_lshlrev_b32 v22, 8, v1                    ; j*256")
    A("    v_add_u32 v22, s26, v22")
    A("    v_xor_b32 v3, v1, v2                        ; j ^ g")
    for t in range(4):
        A(f"    v_xor_b32 v23, {4*t}, v3")
        A(f"    v_lshl_add_u32 v{vKad+t}, v23, 4, v22")
    A("    v_lshrrev_b32 v3, 2, v0                     ; 4g+r")
    A("    v_lshlrev_b32 v22, 8, v3                    ; row*256")
    A("    v_add_u32 v22, s26, v22")
    A("    v_and_b32 v23, 3, v0")
    A("    v_lshl_add_u32 v22, v23, 3, v22             ; + 8c4")
    A("    v_add_u32 v22, 8192, v22")
    A("    v_and_b32 v3, 7, v3                         ; s&7")
    A("    s_lshl_b32 s44, s25, 1                      ; 2c")
    for b in range(8):
        A(f"    s_add_u32 s45, s44, {b}")
        A(f"    s_and_b32 s45, s45, 7")
        A(f"    v_xor_b32 v23, s45, v3")
        A(f"    v_lshl_add_u32 v{vVad+b}, v23, 5, v22")
    A("    v_lshlrev_b32 v3, 4, v0                     ; lane*16")
    for k in range(1, 4):
        A(f"    s_add_u32 s45, s25, {k}")
        A(f"    s_and_b32 s45, s45, 3")
        A(f"    s_mul_i32 s45, s45, 6144")
        A(f"    s_add_u32 s45, s45, {SCR + (k-1)*2048}")
        A(f"    v_add_u32 v{vX+k-1}, s45, v3")
    A(f"    s_mul_i32 s45, s25, 6144")
    A(f"    s_add_u32 s45, s45, {SCR}")
    A(f"    v_add_u32 v{vX+3}, s45, v3")
    A(f"    s_lshl_b32 s45, s25, 10")
    A(f"    s_add_u32 s45, s45, {ZSC}")
    A(f"    v_add_u32 v{vX+4}, s45, v3")
    A(f"    v_add_u32 v{vX+5}, {ZSC}, v3")
    A("    v_lshlrev_b32 v3, 2, v0")
    A("    s_lshl_b32 s45, s25, 8")
    A(f"    s_add_u32 s45, s45, {F_FREE}")
    A(f"    v_add_u32 v{vX+6}, s45, v3")
    A("    v_and_b32 v3, 3, v0")
    A("    v_lshlrev_b32 v3, 8, v3")
    A(f"    v_add_u32 v{vX+7}, {F_DONE}, v3")
    A(f"    v_mov_b32 v{vFa}, {F_FULL}")
    A("    s_mov_b32 s27, 0xffff0000")
    A("    s_mov_b32 s28, 0x3e9837f0                   ; 128^-0.25 (f32)")
    A("    s_mov_b32 s29, 0x3e9837f0")
    A("    s_mov_b32 s30, 0x3fb8aa3b                   ; log2(e)")
    A("    s_mov_b32 s31, 0x3e800000                   ; 0.25")
    A(f"    v_mov_b32 v{vHalf}, 0.5")
    for i in range(4):
        A(f"    v_mov_b32 v{vOnes+i}, 0x3f803f80")
    A(f"    v_mov_b32 v{vC1}, 0x358637bd               ; 1e-6")

    def scale_regs(base, n, dacc):
        for i in range(n):
            t = vT + 2 * (i % 4)
            A(f"    v_lshlrev_b32 v{t}, 16, v{base+i}")
            A(f"    v_and_b32 v{t+1}, s27, v{base+i}")
            A(f"    v_pk_mul_f32 {vr(t,2)}, {vr(t,2)}, s[28:29]")
            A(f"    v_cvt_pk_bf16_f32 v{base+i}, v{t}, v{t+1}")
            if i == 0:
                A(f"    v_dot2_f32_bf16 v{dacc}, v{base+i}, v{base+i}, 0")
            else:
                A(f"    v_dot2_f32_bf16 v{dacc}, v{base+i}, v{base+i}, v{dacc}")

    def feat(P, S, O):
        t = vT + 8
        A(f"    v_cvt_pk_bf16_f32 v{t}, v{P}, v{P+1}")
        A(f"    v_cvt_pk_bf16_f32 v{t+1}, v{P+2}, v{P+3}")
        A(f"    v_cvt_pk_bf16_f32 v{t+2}, v{S}, v{S+1}")
        A(f"    v_cvt_pk_bf16_f32 v{t+3}, v{S+2}, v{S+3}")
        def unpack(dst, src0, src1):
            A(f"    v_lshlrev_b32 v{dst}, 16, v{src0}")
            A(f"    v_and_b32 v{dst+1}, s27, v{src0}")
            A(f"    v_lshlrev_b32 v{dst+2}, 16, v{src1}")
            A(f"    v_and_b32 v{dst+3}, s27, v{src1}")
        unpack(P, t, t + 1)
        unpack(S, t + 2, t + 3)
        for r in range(4):
            A(f"    v_sub_f32 v{P+r}, v{P+r}, v{S+r}")
        A(f"    v_cvt_pk_bf16_f32 v{t}, v{P}, v{P+1}")
        A(f"    v_cvt_pk_bf16_f32 v{t+1}, v{P+2}, v{P+3}")
        unpack(P, t, t + 1)
        for r in range(4):
            A(f"    v_mul_f32 v{P+r}, s30, v{P+r}")
        for r in range(4):
            A(f"    v_exp_f32 v{P+r}, v{P+r}")
        A("    s_nop 0")
        A(f"    v_cvt_pk_bf16_f32 v{t}, v{P}, v{P+1}")
        A(f"    v_cvt_pk_bf16_f32 v{t+1}, v{P+2}, v{P+3}")
        unpack(P, t, t + 1)
        for r in range(4):
            A(f"    v_fma_f32 v{P+r}, v{P+r}, s31, v{vC1}")
        A(f"    v_cvt_pk_bf16_f32 v{O}, v{P}, v{P+1}")
        A(f"    v_cvt_pk_bf16_f32 v{O+1}, v{P+2}, v{P+3}")

    A("    s_waitcnt vmcnt(0)")
    for h in range(2):
        scale_regs(vV + 16 * h, 16, vD)
        A("    s_nop 2")
        for t in range(4):
            c = "0" if t == 0 else vr(vP, 4)
            A(f"    v_mfma_f32_16x16x32_bf16 {vr(vP,4)}, {vr(vOm+4*t,4)}, {vr(vV+16*h+4*t,4)}, {c}")
        A(f"    v_mfma_f32_16x16x4_f32 {vr(vS,4)}, v{vHalf}, v{vD}, 0")
        A("    s_nop 7")
        A("    s_nop 7")
        feat(vP, vS, vPq + 2 * h)

    def poll_full(sneed):
        l = lab("pf"); g = lab("pg")
        A(f"{l}:")
        A(f"    ds_read_b32 v{vFl}, v{vFa}")
        A("    s_waitcnt lgkmcnt(0)")
        A(f"    v_readfirstlane_b32 s45, v{vFl}")
        A("    s_nop 1")
        A(f"    s_cmp_ge_i32 s45, {sneed}")
        A(f"    s_cbranch_scc1 {g}")
        A("    s_sub_u32 s59, s59, 1")
        A("    s_cbranch_scc1 L_done")
        if SLEEP: A(f"    s_sleep {SLEEP}")
        A(f"    s_branch {l}")
        A(f"{g}:")

    A("    s_add_u32 s12, s40, s63")
    A("    s_addc_u32 s13, s41, 0")
    A("    s_and_b32 s13, s13, 0xffff")
    A("    s_mov_b32 s14, 2048")
    A("    s_mov_b32 s20, 1                            ; K needed: 2s+1")
    A("    s_mov_b32 s22, 0")
    A("    s_mov_b32 s23, 1                            ; epoch")
    A("L_bh:")
    for i in range(36):
        A(f"    v_mov_b32 v{vAcc+i}, 0")
    A("    s_mov_b32 s24, 16")
    A(".p2align 6")
    A("L_tile:")
    poll_full("s20")
    for u in range(2):
        for t in range(4):
            A(f"    ds_read_b128 {vr(vK+16*u+4*t,4)}, v{vKad+t} offset:{u*4096}")
    A("    s_add_u32 s21, s20, 1")
    A("    s_waitcnt lgkmcnt(0)")
    for u in range(2):
        scale_regs(vK + 16 * u, 16, vD + u)
    A("    s_nop 2")
    for u in range(2):
        for t in range(4):
            c = "0" if t == 0 else vr(vP + 4 * u, 4)
            A(f"    v_mfma_f32_16x16x32_bf16 {vr(vP+4*u,4)}, {vr(vK+16*u+4*t,4)}, {vr(vOm+4*t,4)}, {c}")
        A(f"    v_mfma_f32_16x16x4_f32 {vr(vS+4*u,4)}, v{vD+u}, v{vHalf}, 0")
    A("    s_nop 7")
    A("    s_nop 7")
    feat(vP, vS, vPhi)
    feat(vP + 4, vS + 4, vPhi + 2)
    poll_full("s21")
    for bb in range(8):
        for u in range(2):
            A(f"    ds_read_b64_tr_b16 {vr(vV+4*bb+2*u,2)}, v{vVad+bb} offset:{u*4096}")
    A("    s_add_u32 s22, s22, 1")
    A(f"    v_mov_b32 v{vFl}, s22")
    A("    s_waitcnt lgkmcnt(0)")
    A(f"    ds_write_b32 v{vX+6}, v{vFl}                ; free")
    for bb in range(8):
        A(f"    v_mfma_f32_16x16x32_bf16 {vr(vAcc+4*bb,4)}, {vr(vPhi,4)}, {vr(vV+4*bb,4)}, {vr(vAcc+4*bb,4)}")
    A(f"    v_mfma_f32_16x16x32_bf16 {vr(vZ,4)}, {vr(vPhi,4)}, {vr(vOnes,4)}, {vr(vZ,4)}")
    for t in range(4):
        A(f"    v_xor_b32 v{vKad+t}, 0x4000, v{vKad+t}")
    for b in range(8):
        A(f"    v_xor_b32 v{vVad+b}, 0x4000, v{vVad+b}")
    A("    s_add_u32 s20, s20, 2")
    A("    s_sub_u32 s24, s24, 1")
    A("    s_cmp_lg_u32 s24, 0")
    A("    s_cbranch_scc1 L_tile")

    A("    s_nop 7")
    for k in range(1, 4):
        for bb in range(2):
            A(f"    ds_write_b128 v{vX+k-1}, {vr(vAcc+8*k+4*bb,4)} offset:{bb*1024}")
    A(f"    ds_write_b128 v{vX+4}, {vr(vZ,4)}")
    A(f"    v_mov_b32 v{vFl}, s23")
    A("    s_waitcnt lgkmcnt(0)")
    A(f"    ds_write_b32 v{vX+6}, v{vFl} offset:1024")
    l = lab("pd")
    A(f"{l}:")
    A(f"    ds_read_b32 v{vFl}, v{vX+7}")
    A("    s_waitcnt lgkmcnt(0)")
    A("    s_sub_u32 s59, s59, 1")
    A("    s_cbranch_scc1 L_done")
    A(f"    v_cmp_gt_u32 vcc, s23, v{vFl}")
    A(f"    s_cbranch_vccnz {l}")
    for k in range(1, 4):
        for bb in range(2):
            A(f"    ds_read_b128 {vr(vK+8*(k-1)+4*bb,4)}, v{vX+3} offset:{(k-1)*2048+bb*1024}")
    for w in range(4):
        A(f"    ds_read_b128 {vr(vV+4*w,4)}, v{vX+5} offset:{w*1024}")
    A("    v_lshlrev_b32 v3, 8, v1                     ; j*256")
    A("    v_lshl_add_u32 v3, v2, 3, v3                ; + g*8")
    A("    s_lshl_b32 s44, s25, 6")
    A("    v_add_u32 v3, s44, v3")
    A("    s_waitcnt lgkmcnt(0)")
    for k in range(1, 4):
        for bb in range(2):
            for r in range(4):
                A(f"    v_add_f32 v{vAcc+4*bb+r}, v{vAcc+4*bb+r}, v{vK+8*(k-1)+4*bb+r}")
    for w in range(1, 4):
        for r in range(4):
            A(f"    v_add_f32 v{vV+r}, v{vV+r}, v{vV+4*w+r}")
    for bb in range(2):
        A(f"    v_cvt_pk_bf16_f32 v{vT+2*bb}, v{vAcc+4*bb}, v{vAcc+4*bb+1}")
        A(f"    v_cvt_pk_bf16_f32 v{vT+2*bb+1}, v{vAcc+4*bb+2}, v{vAcc+4*bb+3}")
    A(f"    v_cvt_pk_bf16_f32 v{vT+8}, v{vV}, v{vV+1}")
    A(f"    v_cvt_pk_bf16_f32 v{vT+9}, v{vV+2}, v{vV+3}")
    A("    s_nop 1")
    for bb in range(2):
        A(f"    v_mfma_f32_16x16x16_bf16 {vr(vAcc+4*bb,4)}, {vr(vT+2*bb,2)}, {vr(vPq,2)}, 0")
    A(f"    v_mfma_f32_16x16x16_bf16 {vr(vZ,4)}, {vr(vT+8,2)}, {vr(vPq,2)}, 0")
    A("    s_nop 7")
    A("    s_nop 1")
    A(f"    v_cvt_pk_bf16_f32 v{vT}, v{vZ}, v{vZ}")
    A(f"    v_and_b32 v{vT}, s27, v{vT}")
    A(f"    v_add_f32 v{vT}, v{vT}, v{vC1}")
    A(f"    v_cvt_pk_bf16_f32 v{vT}, v{vT}, v{vT}")
    A(f"    v_and_b32 v{vT}, s27, v{vT}               ; den")
    A(f"    v_rcp_f32 v{vT+1}, v{vT}")
    for bb in range(2):
        a = vAcc + 4 * bb
        A(f"    v_cvt_pk_bf16_f32 v{vT+2}, v{a}, v{a+1}")
        A(f"    v_cvt_pk_bf16_f32 v{vT+3}, v{a+2}, v{a+3}")
        A(f"    v_lshlrev_b32 v{a}, 16, v{vT+2}")
        A(f"    v_and_b32 v{a+1}, s27, v{vT+2}")
        A(f"    v_lshlrev_b32 v{a+2}, 16, v{vT+3}")
        A(f"    v_and_b32 v{a+3}, s27, v{vT+3}")
        for r in range(4):
            A(f"    v_mul_f32 v{vT+4+r}, v{a+r}, v{vT+1}")
        for r in range(4):
            A(f"    v_fma_f32 v{vT+8+r}, -v{vT+4+r}, v{vT}, v{a+r}")
        for r in range(4):
            A(f"    v_fma_f32 v{vT+4+r}, v{vT+8+r}, v{vT+1}, v{vT+4+r}")
        for r in range(4):
            A(f"    v_div_fixup_f32 v{vT+4+r}, v{vT+4+r}, v{vT}, v{a+r}")
        A(f"    v_cvt_pk_bf16_f32 v{a}, v{vT+4}, v{vT+5}")
        A(f"    v_cvt_pk_bf16_f32 v{a+1}, v{vT+6}, v{vT+7}")
        A(f"    buffer_store_dwordx2 {vr(a,2)}, v3, s[12:15], 0 offen offset:{bb*32}")
    A("    s_cmp_eq_u32 s23, 2")
    A("    s_cbranch_scc1 L_fin")
    A("    s_mov_b32 s23, 2")
    A("    s_add_u32 s12, s12, 2048")
    A("    s_addc_u32 s13, s13, 0")
    A(f"    v_mov_b32 v{vPq}, v{vPq+2}")
    A(f"    v_mov_b32 v{vPq+1}, v{vPq+3}")
    A("    s_branch L_bh")
    A("L_fin:")
    if STAMP:
        A("L_stamp:")
        A("    s_waitcnt vmcnt(0)")
        A("    s_memrealtime s[50:51]")
        A("    s_getreg_b32 s52, hwreg(HW_REG_XCC_ID)")
        A("    s_getreg_b32 s53, hwreg(HW_REG_HW_ID)")
        A("    s_waitcnt lgkmcnt(0)")
        A("    s_mov_b32 s44, s46")
        A("    s_and_b32 s45, s47, 0xffff")
        A("    s_mov_b32 s46, 0x100000")
        A("    s_mov_b32 s47, 0x20000")
        for i, s in enumerate((48, 49, 50, 51, 52, 53)):
            A(f"    v_mov_b32 v{40+i}, s{s}")
        A("    v_readfirstlane_b32 s55, v200") if False else None
        A(f"    s_mul_i32 s54, s2, 5")
        A("    s_add_u32 s54, s54, s58")
        A("    s_lshl_b32 s54, s54, 5")
        A("    v_mov_b32 v46, s54")
        A("    v_cmp_eq_u32 vcc, 0, v0")
        A("    s_and_saveexec_b64 s[56:57], vcc")
        A("    buffer_store_dwordx4 v[40:43], v46, s[44:47], 0 offen")
        A("    buffer_store_dwordx2 v[44:45], v46, s[44:47], 0 offen offset:16")
        A("    s_mov_b64 exec, s[56:57]")
    A("L_done:")
    A("    s_endpgm")
    A('.section .rodata,"a"')
    A(".p2align 6")
    A(".amdhsa_kernel standalone__linear_kernel_rfa__sampling_kernel")
    A(f"  .amdhsa_next_free_vgpr {NV}")
    A("  .amdhsa_next_free_sgpr 96")
    A(f"  .amdhsa_accum_offset {NV}")
    A("  .amdhsa_group_segment_fixed_size 0")
    A("  .amdhsa_kernarg_size 56")
    A("  .amdhsa_user_sgpr_count 2")
    A("  .amdhsa_user_sgpr_kernarg_segment_ptr 1")
    A("  .amdhsa_system_sgpr_workgroup_id_x 1")
    A("  .amdhsa_float_denorm_mode_32 3")
    A(".end_amdhsa_kernel")
    L2 = [x for x in L if x is not None]
    s = "\n".join(L2) + "\n"
    if STAMP:
        s = s.replace("    s_lshr_b32 s25, s25, 6                      ; wave id\n", "    s_lshr_b32 s25, s25, 6                      ; wave id\n    s_mov_b32 s58, s25\n")
    return s

if __name__ == "__main__":
    kw = {}
    out = sys.argv[1]
    for a in sys.argv[2:]:
        k, v = a.split("=")
        try: v = int(v)
        except ValueError:
            try: v = float(v)
            except ValueError: pass
        kw[k] = v
    open(out, "w").write(gen(**kw))
```

```python
import sys

def gen(DLO=18, DHI=22, DINIT=20, POL="nt", STAMP=0, SLEEP=1, PRIO=3, MIMIC=1, CTL=1, CK0=8, CKI=8, NCK=15, STATIC=0, CSLEEP=3, RMAP=0, CMODE=6, LAG=4, GAIN=2.0, DMID=20.0, WIN=400, STPOL="sc0 sc1", LDPOL="", NOST=0, NOLD=0, DBG=1, PUB=1, FIXD=0, STRIDE=128, MINC=4, NPUB=32, ROT=0, ORD=0, PAT=1, KVI=0, PB="012", JB="", SB="", MAP=""):
    NC = 4
    SLOTB = 16384
    RING = 8 * SLOTB
    SCR = RING
    ZSC = SCR + 24576
    FLG = ZSC + 4096
    F_FULL, F_FREE, F_DONE = FLG, FLG + 256, FLG + 256 + 1024
    F_CTL = FLG + 2304
    LDS = FLG + 2304 + 256
    assert LDS <= 163840
    NT = 128
    pol = (" " + POL) if POL else ""
    L = []; A = L.append
    vKoff, vVoff, vKad, vVad = 4, 8, 10, 14
    vOm, vK, vV, vAcc, vZ = 24, 40, 72, 104, 136
    vP, vS, vT, vPhi, vPq = 140, 148, 156, 172, 176
    vHalf, vOnes, vC1, vD = 180, 184, 188, 190
    vFl, vFa = 22, 23
    vX = 192
    NV = 200
    def vr(b, n): return f"v[{b}:{b+n-1}]"
    uid = [0]
    def lab(p):
        uid[0] += 1
        return f"L_{p}{uid[0]}"

    A(f"; @launch grid=(256,1,1) block=({384 if CTL==1 else 320},1,1) lds={LDS}")
    A('.amdgcn_target "amdgcn-amd-amdhsa--gfx950"')
    A(".text")
    A(".globl standalone__linear_kernel_rfa__sampling_kernel")
    A(".p2align 8")
    A(".type standalone__linear_kernel_rfa__sampling_kernel,@function")
    A("standalone__linear_kernel_rfa__sampling_kernel:")
    A("    s_cmp_ge_u32 s2, 256")
    A("    s_cbranch_scc1 L_done")
    A("    s_load_dwordx8 s[32:39], s[0:1], 0          ; q, k, v, omega")
    A("    s_load_dwordx4 s[40:43], s[0:1], 32")
    A("    s_load_dwordx2 s[46:47], s[0:1], 48         ; ws")
    if STAMP:
        A("    s_memrealtime s[48:49]")
    A("    v_readfirstlane_b32 s25, v0")
    A("    v_and_b32 v0, 63, v0                        ; lane")
    A("    v_and_b32 v1, 15, v0                        ; j")
    A("    v_lshrrev_b32 v2, 4, v0                     ; g")
    A("    s_lshr_b32 s25, s25, 6")
    A("    s_lshl_b32 s62, s2, 20")
    A("    s_mov_b32 s59, 0x200000")
    if CTL == 1:
        A("    s_cmp_eq_u32 s25, 5")
        A("    s_cbranch_scc1 L_ctl")
    A("    s_cmp_lg_u32 s25, 0")
    A("    s_cbranch_scc1 L_consumer")

    if PRIO: A(f"    s_setprio {PRIO}")
    GSH = {0: 8, 1: 8, 2: 8, 3: 12, 4: 13}[PAT]
    MAP = str(MAP)
    if MAP != "":
        ML = [int(ch, 16) + 8 for ch in MAP.replace("m", "")]
        assert sorted(ML) == list(range(8, 19)), ML
        A("    v_and_b32 v22, 1, v2")
        A(f"    v_lshlrev_b32 v22, {ML[0]}, v22")
        A("    v_lshrrev_b32 v3, 1, v2")
        A(f"    v_lshl_or_b32 v22, v3, {ML[1]}, v22")
        A("    v_xor_b32 v3, v1, v2                        ; j ^ g")
    else:
        A("    v_xor_b32 v3, v1, v2                        ; j ^ g")
        A(f"    v_lshlrev_b32 v22, {GSH}, v2")
    for p in range(4):
        A(f"    v_xor_b32 v23, {4*p}, v3")
        A(f"    v_lshl_add_u32 v{vKoff+p}, v23, 4, v22")
    A("    v_lshlrev_b32 v23, 1, v2")
    A("    v_xor_b32 v3, v1, v23                       ; j ^ 2g")
    for p in range(2):
        A(f"    v_xor_b32 v23, {8*p}, v3")
        A(f"    v_lshl_add_u32 v{vVoff+p}, v23, 4, v22")
    A("    v_lshlrev_b32 v12, 2, v0                    ; lane*4")
    A(f"    v_add_u32 v12, {F_FULL}, v12")
    A("    v_mov_b32 v13, 0")
    for k in range(8):
        A(f"    ds_write_b32 v12, v13 offset:{256 + 256*k}")
    A("    v_mov_b32 v14, 0x80000000")
    A("    ds_write_b32 v12, v14")
    if STATIC == 1:
        A("    s_bfe_u32 s23, s2, 0x10003                  ; (wg>>3)&1")
        A(f"    s_mul_i32 s23, s23, {DHI-DLO}")
        A(f"    s_add_u32 s23, s23, {DLO}")
        A("    v_mov_b32 v14, s23")
    elif STATIC == 2:
        A("    s_and_b32 s23, s2, 1")
        A(f"    s_mul_i32 s23, s23, {DHI-DLO}")
        A(f"    s_add_u32 s23, s23, {DLO}")
        A("    v_mov_b32 v14, s23")
    else:
        A(f"    v_mov_b32 v14, {DINIT}")
    A(f"    ds_write_b32 v12, v14 offset:{F_CTL-F_FULL}")
    A("    v_and_b32 v15, 3, v0")
    A("    v_lshlrev_b32 v15, 8, v15")
    A(f"    v_add_u32 v15, {F_FREE}, v15")
    A(f"    v_mov_b32 v14, {F_CTL}")
    A("    v_cmp_eq_u32 vcc, 4, v0")
    A("    v_cndmask_b32 v15, v15, v14, vcc")
    A("    ds_read_b32 v16, v15")
    A("    s_waitcnt lgkmcnt(0)")
    A("    s_barrier")
    A("    s_add_u32 s4, s34, s62")
    A("    s_addc_u32 s5, s35, 0")
    A("    s_and_b32 s5, s5, 0xffff")
    A("    s_mov_b32 s6, 0x100000")
    A("    s_mov_b32 s7, 0x20000")
    A("    s_add_u32 s8, s36, s62")
    A("    s_addc_u32 s9, s37, 0")
    A("    s_and_b32 s9, s9, 0xffff")
    A("    s_mov_b32 s10, 0x100000")
    A("    s_mov_b32 s11, 0x20000")
    A("    s_mov_b32 s20, 0                            ; x (tile)")
    PBL = [int(ch) for ch in str(PB).zfill(3)]
    RBL = [b for b in range(7) if b not in PBL]
    def pg(p): return sum(((p >> k) & 1) << (12 + PBL[k]) for k in range(3))
    if JB != "":
        JBL = [int(ch) + 10 for ch in str(JB).zfill(5)]
        SBL = [int(ch) + 10 for ch in str(SB).zfill(4)] if SB != "" else [b for b in range(10, 19) if b not in JBL]
        assert sorted(JBL + SBL) == list(range(10, 19))
        RBL = [b - 12 for b in SBL]
    if MAP != "":
        JBL = ML[2:7]; RBL = [b - 12 for b in ML[7:]]
    def offj(j):
        if MAP != "": return sum(((j >> k) & 1) << JBL[k] for k in range(5))
        if JB != "": return sum(((j >> k) & 1) << JBL[k] for k in range(5))
        if PAT == 1: return pg(j & 7) + (j >> 3) * 1024
        if PAT == 2: return pg(j & 7) + (((j >> 3) + (j & 7)) & 3) * 1024
        if PAT == 0: return (j >> 2) * 4096 + (j & 3) * 1024
        if PAT == 1: return (j & 7) * 4096 + (j >> 3) * 1024
        if PAT == 2: return (j & 7) * 4096 + (((j >> 3) + (j & 7)) & 3) * 1024
        if PAT == 3: return (j & 1) * 16384 + (j >> 1) * 256
        if PAT == 4: return (j & 1) * 4096 + (j >> 1) * 256
    gof = (lambda g: ((g & 1) << ML[0]) | ((g >> 1) << ML[1])) if MAP != "" else (lambda g: g << GSH)
    assert sorted(offj(j) + gof(g) + sum(((sv >> m) & 1) << (12 + RBL[m]) for m in range(4)) for j in range(32) for g in range(4) for sv in range(16)) == [256 * r for r in range(2048)]
    NS = NT // 4
    if ROT == 2:
        A("    s_lshr_b32 s19, s2, 4")
    elif ROT == 8:
        A("    s_lshr_b32 s19, s2, 3")
    else:
        A("    s_mov_b32 s19, 0")
    A("    s_and_b32 s19, s19, 15")
    def emit_off():
        A("    s_add_u32 s21, s20, s19")
        A("    s_and_b32 s21, s21, 15")
        if RBL == [3, 4, 5, 6]:
            A("    s_and_b32 s27, s20, 16")
            A("    s_or_b32 s21, s21, s27")
            A("    s_lshl_b32 s21, s21, 15")
        else:
            A("    s_and_b32 s27, s20, 16")
            A("    s_lshl_b32 s29, s27, 15")
            for m in range(4):
                A(f"    s_bfe_u32 s27, s21, {1 << 16 | m}")
                A(f"    s_lshl_b32 s27, s27, {12 + RBL[m]}")
                A(f"    s_or_b32 s29, s29, s27")
            A("    s_mov_b32 s21, s29")
    A("    s_mov_b32 s20, 0")
    emit_off()
    A(f"    s_mov_b32 s22, 0x80000000")
    A(".p2align 6")
    A("L_ld:")
    A("    s_and_b32 s26, s20, 1")
    A("    s_lshl_b32 s26, s26, 14")
    A("    s_add_i32 s28, s20, -1")
    if STAMP == 2:
        A("    s_memrealtime s[60:61]")
    A("L_ld_chk:")
    A("    s_waitcnt lgkmcnt(0)")
    if STAMP == 2:
        A("    s_lshl_b32 m0, s20, 2")
        A("    s_bitcmp1_b32 s20, 4")
        A("    s_cbranch_scc1 L_st_hi")
        A("    v_writelane_b32 v17, s60, m0")
        A("    s_branch L_st_dn")
        A("L_st_hi:")
        A("    v_writelane_b32 v18, s60, m0")
        A("L_st_dn:")
    A("    v_cmp_gt_i32 vcc, s28, v16")
    A("    v_readlane_b32 s31, v16, 4")
    A("    s_lshl_b32 s24, s20, 1                      ; 2s")
    A("    s_nop 1")
    A("    s_and_b32 s27, vcc_lo, 15")
    A("    s_cbranch_scc0 L_ld_go")
    A("    s_sub_u32 s59, s59, 1")
    A("    s_cbranch_scc1 L_done")
    A("    ds_read_b32 v16, v15")
    A("    s_branch L_ld_chk")
    A("L_ld_go:")
    DS = list(range(DLO, DHI + 1))
    assert DHI <= 32
    for D in DS[:-1]:
        A(f"    s_cmp_le_u32 s31, {D}")
        A(f"    s_cbranch_scc1 L_var{D}")
    for D in reversed(DS):
        A(f"L_var{D}:")
        for jj in range(64):
            if KVI == 0:
                half = jj // 32; j = jj % 32
            elif KVI == 1:
                half = jj & 1; j = jj >> 1
            elif KVI == 2:
                half = (jj >> 3) & 1; j = (jj & 7) | ((jj >> 4) << 3)
            srd = "s[4:7]" if half == 0 else "s[8:11]"
            t = j >> 3; u = (j >> 2) & 1; i = j & 3
            A(f"    s_add_u32 m0, s26, {t*32768 + half*8192 + u*4096 + i*1024}")
            A(f"    s_add_u32 s30, s21, {offj(j)}")
            A(f"    s_waitcnt vmcnt({D-1})")
            if KVI == 0 and jj % 32 == (D - 1) % 32:
                c = (jj - (D - 1)) // 32
                A(f"    s_add_i32 s27, s24, {c}")
                A(f"    s_max_i32 s22, s22, s27")
                A(f"    v_mov_b32 v13, s22")
                A(f"    ds_write_b32 v12, v13")
            if KVI and jj == D - 1:
                A(f"    s_max_i32 s22, s22, s24")
                A(f"    v_mov_b32 v13, s22")
                A(f"    ds_write_b32 v12, v13")
            if jj == 56:
                A("    ds_read_b32 v16, v15")
            vo = (vKoff + i) if half == 0 else (vVoff + (i & 1))
            A(f"    buffer_load_dwordx4 v{vo}, {srd}, s30 offen{pol} lds")
        A("    s_add_u32 s20, s20, 1")
        emit_off()
        A(f"    s_cmp_lt_u32 s20, {NS}")
        A("    s_cbranch_scc1 L_ld")
        if D != DS[0]:
            A("    s_branch L_drain")
    A("L_drain:")
    for val in ((2 * NS - 1, 2 * NS) if KVI == 0 else (2 * NS,)):
        A(f"    s_waitcnt vmcnt({NS*64 - 32*val})")
        A(f"    s_max_i32 s22, s22, {val}")
        A(f"    v_mov_b32 v13, s22")
        A(f"    ds_write_b32 v12, v13")
    A("    s_waitcnt lgkmcnt(0)")
    if STAMP == 2:
        A("    s_mov_b32 s4, s46")
        A("    s_and_b32 s5, s47, 0xffff")
        A("    s_mov_b32 s6, 0x1000000")
        A("    s_mov_b32 s7, 0x20000")
        A("    s_lshl_b32 s20, s2, 9")
        A("    s_add_u32 s20, s20, 0x100000")
        A("    v_lshlrev_b32 v19, 2, v0")
        A("    buffer_store_dword v17, v19, s[4:7], s20 offen")
        A("    buffer_store_dword v18, v19, s[4:7], s20 offen offset:256")
    if STAMP:
        A("    s_branch L_stamp")
    else:
        A("    s_endpgm")

    if CTL == 1:
        import struct
        def f32(x): return "0x%08x" % struct.unpack("<I", struct.pack("<f", x))[0]
        def wait_full(sneed, tag):
            A(f"L_ck{tag}:")
            A("    ds_read_b32 v6, v4")
            A("    s_waitcnt lgkmcnt(0)")
            A("    v_readfirstlane_b32 s45, v6")
            A("    s_nop 1")
            A(f"    s_cmp_ge_i32 s45, {sneed}")
            A(f"    s_cbranch_scc1 L_ck{tag}_go")
            A("    s_sub_u32 s59, s59, 1")
            A("    s_cbranch_scc1 L_done")
            A(f"    s_sleep {CSLEEP}")
            A(f"    s_branch L_ck{tag}")
            A(f"L_ck{tag}_go:")
        ROWB = NPUB * STRIDE
        PSH = {64: 2, 32: 3, 16: 4, 8: 5}[NPUB]
        A("L_ctl:")
        A("    s_waitcnt lgkmcnt(0)")
        A("    s_barrier")
        A("    s_add_u32 s4, s46, 0x200000")
        A("    s_addc_u32 s5, s47, 0")
        if STAMP == 2 and DBG:
            A("    s_mov_b32 s8, s4")
            A("    s_and_b32 s9, s5, 0xffff")
            A("    s_mov_b32 s10, 0x100000")
            A("    s_mov_b32 s11, 0x20000")
        A(f"    v_mov_b32 v4, {F_FULL}")
        A(f"    v_mov_b32 v5, {F_CTL}")
        A(f"    s_lshr_b32 s26, s2, {PSH}                     ; l")
        A(f"    s_mul_i32 s33, s26, {STRIDE}")
        A(f"    s_xor_b32 s26, s26, s2")
        A(f"    s_and_b32 s32, s26, {(1 << PSH) - 1 if PSH <= 3 else 7}")
        if PSH > 3:
            A(f"    s_bfe_u32 s26, s2, {(PSH-3) << 16 | 3}")
            A("    s_or_b32 s32, s32, s26")
        A(f"    s_mov_b32 s20, {CK0//2}")
        A("    s_mov_b32 s44, 0")
        A(f"    s_mov_b32 s24, {NCK}")
        A(f"    s_mov_b32 s27, {f32(GAIN/100.0)}")
        A(f"    s_mov_b32 s28, {f32(DMID + 0.5)}")
        A(f"    s_mov_b32 s35, {2*WIN}")
        A("L_ckl:")
        wait_full("s20", "a")
        A("    s_memrealtime s[30:31]")
        A(f"    s_add_u32 s23, s20, {LAG//2}")
        A("    s_waitcnt lgkmcnt(0)")
        if not NOST:
            A("    s_cmp_lg_u32 s32, 0")
            A("    s_cbranch_scc1 L_ck_nopub")
            A("    s_mov_b32 s34, s30")
            A("    s_atomic_swap s34, s[4:5], s33")
            A("L_ck_nopub:")
        wait_full("s23", "b")
        if not NOLD:
            for l in range(NPUB):
                A(f"    s_load_dword s{64+l}, s[4:5], {l*STRIDE}")
        A(f"    s_sub_u32 s22, {WIN}, s30")
        A("    s_mov_b32 s25, 0                            ; sum")
        A("    s_mov_b32 s26, 0                            ; count")
        A("    s_waitcnt lgkmcnt(0)")
        for l in range(NPUB):
            A(f"    s_add_u32 s{64+l}, s{64+l}, s22")
            A(f"    s_cmp_lt_u32 s{64+l}, s35")
            A(f"    s_cselect_b32 s{64+l}, s{64+l}, 0")
            A(f"    s_addc_u32 s26, s26, 0")
            A(f"    s_add_u32 s25, s25, s{64+l}")
        A(f"    s_cmp_lt_u32 s26, {MINC}")
        A("    s_cbranch_scc1 L_ck_dbg")
        A(f"    s_mul_i32 s22, s26, {WIN}")
        A("    s_sub_i32 s25, s22, s25")
        A("    v_cvt_f32_i32 v10, s25")
        A("    v_cvt_f32_u32 v13, s26")
        A("    v_rcp_f32 v13, v13")
        A("    s_nop 0")
        A("    v_mul_f32 v10, v10, v13")
        A("    v_mul_f32 v10, s27, v10")
        A("    v_add_f32 v10, s28, v10")
        A("    v_cvt_i32_f32 v10, v10")
        A(f"    v_max_i32 v10, {DLO}, v10")
        A(f"    v_min_i32 v10, {DHI}, v10")
        if FIXD:
            A(f"    v_mov_b32 v10, {DINIT}")
        A("    ds_write_b32 v5, v10")
        A("L_ck_dbg:")
        if STAMP == 2 and DBG:
            A("    s_mov_b64 exec, 1")
            A("    s_lshl_b32 s25, s2, 6")
            A("    s_add_u32 s25, s25, s44")
            A("    s_add_u32 s25, s25, 0x80000")
            A("    v_mov_b32 v14, s25")
            A("    s_lshl_b32 s26, s26, 8")
            A("    v_or_b32 v13, s26, v10")
            A("    buffer_store_dword v13, v14, s[8:11], 0 offen")
            A("    s_mov_b64 exec, -1")
        A(f"    s_add_u32 s20, s20, {CKI//2}")
        A("    s_add_u32 s44, s44, 4")
        A(f"    s_add_u32 s4, s4, {ROWB}")
        A(f"    s_addc_u32 s5, s5, 0")
        A("    s_sub_u32 s24, s24, 1")
        A("    s_cmp_lg_u32 s24, 0")
        A("    s_cbranch_scc1 L_ckl")
        A("    s_waitcnt vmcnt(0) lgkmcnt(0)")
        A("    s_endpgm")

    A("L_consumer:")
    A("    s_sub_u32 s25, s25, 1                       ; c")
    A("    s_lshl_b32 s26, s25, 15")
    A("    s_lshl_b32 s63, s2, 12")
    A("    v_lshlrev_b32 v22, 4, v2                    ; g*16")
    A("    v_lshl_add_u32 v23, v1, 8, v22              ; j*256 + g*16 (omega)")
    A("    v_and_b32 v3, 7, v1")
    A("    v_lshl_add_u32 v22, v3, 8, v22              ; (j&7)*256 + g*16 (q)")
    A("    s_waitcnt lgkmcnt(0)")
    A("    s_barrier")
    A("    s_add_u32 s12, s32, s63")
    A("    s_addc_u32 s13, s33, 0")
    A("    s_and_b32 s13, s13, 0xffff")
    A("    s_mov_b32 s14, 4096")
    A("    s_mov_b32 s15, 0x20000")
    A("    s_mov_b32 s16, s38")
    A("    s_and_b32 s17, s39, 0xffff")
    A("    s_mov_b32 s18, 4096")
    A("    s_mov_b32 s19, 0x20000")
    for t in range(4):
        A(f"    buffer_load_dwordx4 {vr(vOm+4*t,4)}, v23, s[16:19], 0 offen offset:{64*t}")
    for t in range(4):
        A(f"    buffer_load_dwordx4 {vr(vV+4*t,4)}, v22, s[12:15], 0 offen offset:{64*t}")
    for t in range(4):
        A(f"    buffer_load_dwordx4 {vr(vV+16+4*t,4)}, v22, s[12:15], 0 offen offset:{2048+64*t}")
    A("    v_lshlrev_b32 v22, 8, v1                    ; j*256")
    A("    v_add_u32 v22, s26, v22")
    A("    v_xor_b32 v3, v1, v2                        ; j ^ g")
    for t in range(4):
        A(f"    v_xor_b32 v23, {4*t}, v3")
        A(f"    v_lshl_add_u32 v{vKad+t}, v23, 4, v22")
    A("    v_lshrrev_b32 v3, 2, v0                     ; 4g+r")
    A("    v_lshlrev_b32 v22, 8, v3                    ; row*256")
    A("    v_add_u32 v22, s26, v22")
    A("    v_and_b32 v23, 3, v0")
    A("    v_lshl_add_u32 v22, v23, 3, v22             ; + 8c4")
    A("    v_add_u32 v22, 8192, v22")
    A("    v_and_b32 v3, 7, v3                         ; s&7")
    A("    s_lshl_b32 s44, s25, 1                      ; 2c")
    for b in range(8):
        A(f"    s_add_u32 s45, s44, {b}")
        A(f"    s_and_b32 s45, s45, 7")
        A(f"    v_xor_b32 v23, s45, v3")
        A(f"    v_lshl_add_u32 v{vVad+b}, v23, 5, v22")
    A("    v_lshlrev_b32 v3, 4, v0                     ; lane*16")
    for k in range(1, 4):
        A(f"    s_add_u32 s45, s25, {k}")
        A(f"    s_and_b32 s45, s45, 3")
        A(f"    s_mul_i32 s45, s45, 6144")
        A(f"    s_add_u32 s45, s45, {SCR + (k-1)*2048}")
        A(f"    v_add_u32 v{vX+k-1}, s45, v3")
    A(f"    s_mul_i32 s45, s25, 6144")
    A(f"    s_add_u32 s45, s45, {SCR}")
    A(f"    v_add_u32 v{vX+3}, s45, v3")
    A(f"    s_lshl_b32 s45, s25, 10")
    A(f"    s_add_u32 s45, s45, {ZSC}")
    A(f"    v_add_u32 v{vX+4}, s45, v3")
    A(f"    v_add_u32 v{vX+5}, {ZSC}, v3")
    A("    v_lshlrev_b32 v3, 2, v0")
    A("    s_lshl_b32 s45, s25, 8")
    A(f"    s_add_u32 s45, s45, {F_FREE}")
    A(f"    v_add_u32 v{vX+6}, s45, v3")
    A("    v_and_b32 v3, 3, v0")
    A("    v_lshlrev_b32 v3, 8, v3")
    A(f"    v_add_u32 v{vX+7}, {F_DONE}, v3")
    A(f"    v_mov_b32 v{vFa}, {F_FULL}")
    A("    s_mov_b32 s27, 0xffff0000")
    A("    s_mov_b32 s28, 0x3e9837f0                   ; 128^-0.25 (f32)")
    A("    s_mov_b32 s29, 0x3e9837f0")
    A("    s_mov_b32 s30, 0x3fb8aa3b                   ; log2(e)")
    A("    s_mov_b32 s31, 0x3e800000                   ; 0.25")
    A(f"    v_mov_b32 v{vHalf}, 0.5")
    for i in range(4):
        A(f"    v_mov_b32 v{vOnes+i}, 0x3f803f80")
    A(f"    v_mov_b32 v{vC1}, 0x358637bd               ; 1e-6")

    def scale_regs(base, n, dacc):
        for i in range(n):
            t = vT + 2 * (i % 4)
            A(f"    v_lshlrev_b32 v{t}, 16, v{base+i}")
            A(f"    v_and_b32 v{t+1}, s27, v{base+i}")
            A(f"    v_pk_mul_f32 {vr(t,2)}, {vr(t,2)}, s[28:29]")
            A(f"    v_cvt_pk_bf16_f32 v{base+i}, v{t}, v{t+1}")
            if i == 0:
                A(f"    v_dot2_f32_bf16 v{dacc}, v{base+i}, v{base+i}, 0")
            else:
                A(f"    v_dot2_f32_bf16 v{dacc}, v{base+i}, v{base+i}, v{dacc}")

    def feat(P, S, O):
        t = vT + 8
        A(f"    v_cvt_pk_bf16_f32 v{t}, v{P}, v{P+1}")
        A(f"    v_cvt_pk_bf16_f32 v{t+1}, v{P+2}, v{P+3}")
        A(f"    v_cvt_pk_bf16_f32 v{t+2}, v{S}, v{S+1}")
        A(f"    v_cvt_pk_bf16_f32 v{t+3}, v{S+2}, v{S+3}")
        def unpack(dst, src0, src1):
            A(f"    v_lshlrev_b32 v{dst}, 16, v{src0}")
            A(f"    v_and_b32 v{dst+1}, s27, v{src0}")
            A(f"    v_lshlrev_b32 v{dst+2}, 16, v{src1}")
            A(f"    v_and_b32 v{dst+3}, s27, v{src1}")
        unpack(P, t, t + 1)
        unpack(S, t + 2, t + 3)
        for r in range(4):
            A(f"    v_sub_f32 v{P+r}, v{P+r}, v{S+r}")
        A(f"    v_cvt_pk_bf16_f32 v{t}, v{P}, v{P+1}")
        A(f"    v_cvt_pk_bf16_f32 v{t+1}, v{P+2}, v{P+3}")
        unpack(P, t, t + 1)
        for r in range(4):
            A(f"    v_mul_f32 v{P+r}, s30, v{P+r}")
        for r in range(4):
            A(f"    v_exp_f32 v{P+r}, v{P+r}")
        A("    s_nop 0")
        A(f"    v_cvt_pk_bf16_f32 v{t}, v{P}, v{P+1}")
        A(f"    v_cvt_pk_bf16_f32 v{t+1}, v{P+2}, v{P+3}")
        unpack(P, t, t + 1)
        for r in range(4):
            A(f"    v_fma_f32 v{P+r}, v{P+r}, s31, v{vC1}")
        A(f"    v_cvt_pk_bf16_f32 v{O}, v{P}, v{P+1}")
        A(f"    v_cvt_pk_bf16_f32 v{O+1}, v{P+2}, v{P+3}")

    A("    s_waitcnt vmcnt(0)")
    for h in range(2):
        scale_regs(vV + 16 * h, 16, vD)
        A("    s_nop 2")
        for t in range(4):
            c = "0" if t == 0 else vr(vP, 4)
            A(f"    v_mfma_f32_16x16x32_bf16 {vr(vP,4)}, {vr(vOm+4*t,4)}, {vr(vV+16*h+4*t,4)}, {c}")
        A(f"    v_mfma_f32_16x16x4_f32 {vr(vS,4)}, v{vHalf}, v{vD}, 0")
        A("    s_nop 7")
        A("    s_nop 7")
        feat(vP, vS, vPq + 2 * h)

    def poll_full(sneed):
        l = lab("pf"); g = lab("pg")
        A(f"{l}:")
        A(f"    ds_read_b32 v{vFl}, v{vFa}")
        A("    s_waitcnt lgkmcnt(0)")
        A(f"    v_readfirstlane_b32 s45, v{vFl}")
        A("    s_nop 1")
        A(f"    s_cmp_ge_i32 s45, {sneed}")
        A(f"    s_cbranch_scc1 {g}")
        A("    s_sub_u32 s59, s59, 1")
        A("    s_cbranch_scc1 L_done")
        if SLEEP: A(f"    s_sleep {SLEEP}")
        A(f"    s_branch {l}")
        A(f"{g}:")

    A("    s_add_u32 s12, s40, s63")
    A("    s_addc_u32 s13, s41, 0")
    A("    s_and_b32 s13, s13, 0xffff")
    A("    s_mov_b32 s14, 2048")
    A("    s_mov_b32 s20, 1                            ; K needed: 2s+1")
    A("    s_mov_b32 s22, 0")
    A("    s_mov_b32 s23, 1                            ; epoch")
    A("L_bh:")
    for i in range(36):
        A(f"    v_mov_b32 v{vAcc+i}, 0")
    A("    s_mov_b32 s24, 16")
    A(".p2align 6")
    A("L_tile:")
    poll_full("s20")
    for u in range(2):
        for t in range(4):
            A(f"    ds_read_b128 {vr(vK+16*u+4*t,4)}, v{vKad+t} offset:{u*4096}")
    A("    s_add_u32 s21, s20, 1")
    A("    s_waitcnt lgkmcnt(0)")
    for u in range(2):
        scale_regs(vK + 16 * u, 16, vD + u)
    A("    s_nop 2")
    for u in range(2):
        for t in range(4):
            c = "0" if t == 0 else vr(vP + 4 * u, 4)
            A(f"    v_mfma_f32_16x16x32_bf16 {vr(vP+4*u,4)}, {vr(vK+16*u+4*t,4)}, {vr(vOm+4*t,4)}, {c}")
        A(f"    v_mfma_f32_16x16x4_f32 {vr(vS+4*u,4)}, v{vD+u}, v{vHalf}, 0")
    A("    s_nop 7")
    A("    s_nop 7")
    feat(vP, vS, vPhi)
    feat(vP + 4, vS + 4, vPhi + 2)
    poll_full("s21")
    for bb in range(8):
        for u in range(2):
            A(f"    ds_read_b64_tr_b16 {vr(vV+4*bb+2*u,2)}, v{vVad+bb} offset:{u*4096}")
    A("    s_add_u32 s22, s22, 1")
    A(f"    v_mov_b32 v{vFl}, s22")
    A("    s_waitcnt lgkmcnt(0)")
    A(f"    ds_write_b32 v{vX+6}, v{vFl}                ; free")
    for bb in range(8):
        A(f"    v_mfma_f32_16x16x32_bf16 {vr(vAcc+4*bb,4)}, {vr(vPhi,4)}, {vr(vV+4*bb,4)}, {vr(vAcc+4*bb,4)}")
    A(f"    v_mfma_f32_16x16x32_bf16 {vr(vZ,4)}, {vr(vPhi,4)}, {vr(vOnes,4)}, {vr(vZ,4)}")
    for t in range(4):
        A(f"    v_xor_b32 v{vKad+t}, 0x4000, v{vKad+t}")
    for b in range(8):
        A(f"    v_xor_b32 v{vVad+b}, 0x4000, v{vVad+b}")
    A("    s_add_u32 s20, s20, 2")
    A("    s_sub_u32 s24, s24, 1")
    A("    s_cmp_lg_u32 s24, 0")
    A("    s_cbranch_scc1 L_tile")

    A("    s_nop 7")
    for k in range(1, 4):
        for bb in range(2):
            A(f"    ds_write_b128 v{vX+k-1}, {vr(vAcc+8*k+4*bb,4)} offset:{bb*1024}")
    A(f"    ds_write_b128 v{vX+4}, {vr(vZ,4)}")
    A(f"    v_mov_b32 v{vFl}, s23")
    A("    s_waitcnt lgkmcnt(0)")
    A(f"    ds_write_b32 v{vX+6}, v{vFl} offset:1024")
    l = lab("pd")
    A(f"{l}:")
    A(f"    ds_read_b32 v{vFl}, v{vX+7}")
    A("    s_waitcnt lgkmcnt(0)")
    A("    s_sub_u32 s59, s59, 1")
    A("    s_cbranch_scc1 L_done")
    A(f"    v_cmp_gt_u32 vcc, s23, v{vFl}")
    A(f"    s_cbranch_vccnz {l}")
    for k in range(1, 4):
        for bb in range(2):
            A(f"    ds_read_b128 {vr(vK+8*(k-1)+4*bb,4)}, v{vX+3} offset:{(k-1)*2048+bb*1024}")
    for w in range(4):
        A(f"    ds_read_b128 {vr(vV+4*w,4)}, v{vX+5} offset:{w*1024}")
    A("    v_lshlrev_b32 v3, 8, v1                     ; j*256")
    A("    v_lshl_add_u32 v3, v2, 3, v3                ; + g*8")
    A("    s_lshl_b32 s44, s25, 6")
    A("    v_add_u32 v3, s44, v3")
    A("    s_waitcnt lgkmcnt(0)")
    for k in range(1, 4):
        for bb in range(2):
            for r in range(4):
                A(f"    v_add_f32 v{vAcc+4*bb+r}, v{vAcc+4*bb+r}, v{vK+8*(k-1)+4*bb+r}")
    for w in range(1, 4):
        for r in range(4):
            A(f"    v_add_f32 v{vV+r}, v{vV+r}, v{vV+4*w+r}")
    for bb in range(2):
        A(f"    v_cvt_pk_bf16_f32 v{vT+2*bb}, v{vAcc+4*bb}, v{vAcc+4*bb+1}")
        A(f"    v_cvt_pk_bf16_f32 v{vT+2*bb+1}, v{vAcc+4*bb+2}, v{vAcc+4*bb+3}")
    A(f"    v_cvt_pk_bf16_f32 v{vT+8}, v{vV}, v{vV+1}")
    A(f"    v_cvt_pk_bf16_f32 v{vT+9}, v{vV+2}, v{vV+3}")
    A("    s_nop 1")
    for bb in range(2):
        A(f"    v_mfma_f32_16x16x16_bf16 {vr(vAcc+4*bb,4)}, {vr(vT+2*bb,2)}, {vr(vPq,2)}, 0")
    A(f"    v_mfma_f32_16x16x16_bf16 {vr(vZ,4)}, {vr(vT+8,2)}, {vr(vPq,2)}, 0")
    A("    s_nop 7")
    A("    s_nop 1")
    A(f"    v_cvt_pk_bf16_f32 v{vT}, v{vZ}, v{vZ}")
    A(f"    v_and_b32 v{vT}, s27, v{vT}")
    A(f"    v_add_f32 v{vT}, v{vT}, v{vC1}")
    A(f"    v_cvt_pk_bf16_f32 v{vT}, v{vT}, v{vT}")
    A(f"    v_and_b32 v{vT}, s27, v{vT}               ; den")
    A(f"    v_rcp_f32 v{vT+1}, v{vT}")
    for bb in range(2):
        a = vAcc + 4 * bb
        A(f"    v_cvt_pk_bf16_f32 v{vT+2}, v{a}, v{a+1}")
        A(f"    v_cvt_pk_bf16_f32 v{vT+3}, v{a+2}, v{a+3}")
        A(f"    v_lshlrev_b32 v{a}, 16, v{vT+2}")
        A(f"    v_and_b32 v{a+1}, s27, v{vT+2}")
        A(f"    v_lshlrev_b32 v{a+2}, 16, v{vT+3}")
        A(f"    v_and_b32 v{a+3}, s27, v{vT+3}")
        for r in range(4):
            A(f"    v_mul_f32 v{vT+4+r}, v{a+r}, v{vT+1}")
        for r in range(4):
            A(f"    v_fma_f32 v{vT+8+r}, -v{vT+4+r}, v{vT}, v{a+r}")
        for r in range(4):
            A(f"    v_fma_f32 v{vT+4+r}, v{vT+8+r}, v{vT+1}, v{vT+4+r}")
        for r in range(4):
            A(f"    v_div_fixup_f32 v{vT+4+r}, v{vT+4+r}, v{vT}, v{a+r}")
        A(f"    v_cvt_pk_bf16_f32 v{a}, v{vT+4}, v{vT+5}")
        A(f"    v_cvt_pk_bf16_f32 v{a+1}, v{vT+6}, v{vT+7}")
        A(f"    buffer_store_dwordx2 {vr(a,2)}, v3, s[12:15], 0 offen offset:{bb*32}")
    A("    s_cmp_eq_u32 s23, 2")
    A("    s_cbranch_scc1 L_fin")
    A("    s_mov_b32 s23, 2")
    A("    s_add_u32 s12, s12, 2048")
    A("    s_addc_u32 s13, s13, 0")
    A(f"    v_mov_b32 v{vPq}, v{vPq+2}")
    A(f"    v_mov_b32 v{vPq+1}, v{vPq+3}")
    A("    s_branch L_bh")
    A("L_fin:")
    if STAMP:
        A("L_stamp:")
        A("    s_waitcnt vmcnt(0)")
        A("    s_memrealtime s[50:51]")
        A("    s_getreg_b32 s52, hwreg(HW_REG_XCC_ID)")
        A("    s_getreg_b32 s53, hwreg(HW_REG_HW_ID)")
        A("    s_waitcnt lgkmcnt(0)")
        A("    s_mov_b32 s44, s46")
        A("    s_and_b32 s45, s47, 0xffff")
        A("    s_mov_b32 s46, 0x100000")
        A("    s_mov_b32 s47, 0x20000")
        for i, s in enumerate((48, 49, 50, 51, 52, 53)):
            A(f"    v_mov_b32 v{40+i}, s{s}")
        A("    v_readfirstlane_b32 s55, v200") if False else None
        A(f"    s_mul_i32 s54, s2, 5")
        A("    s_add_u32 s54, s54, s58")
        A("    s_lshl_b32 s54, s54, 5")
        A("    v_mov_b32 v46, s54")
        A("    v_cmp_eq_u32 vcc, 0, v0")
        A("    s_and_saveexec_b64 s[56:57], vcc")
        A("    buffer_store_dwordx4 v[40:43], v46, s[44:47], 0 offen")
        A("    buffer_store_dwordx2 v[44:45], v46, s[44:47], 0 offen offset:16")
        A("    s_mov_b64 exec, s[56:57]")
    A("L_done:")
    A("    s_endpgm")
    A('.section .rodata,"a"')
    A(".p2align 6")
    A(".amdhsa_kernel standalone__linear_kernel_rfa__sampling_kernel")
    A(f"  .amdhsa_next_free_vgpr {NV}")
    A("  .amdhsa_next_free_sgpr 96")
    A(f"  .amdhsa_accum_offset {NV}")
    A("  .amdhsa_group_segment_fixed_size 0")
    A("  .amdhsa_kernarg_size 56")
    A("  .amdhsa_user_sgpr_count 2")
    A("  .amdhsa_user_sgpr_kernarg_segment_ptr 1")
    A("  .amdhsa_system_sgpr_workgroup_id_x 1")
    A("  .amdhsa_float_denorm_mode_32 3")
    A(".end_amdhsa_kernel")
    L2 = [x for x in L if x is not None]
    s = "\n".join(L2) + "\n"
    if STAMP:
        s = s.replace("    s_lshr_b32 s25, s25, 6                      ; wave id\n", "    s_lshr_b32 s25, s25, 6                      ; wave id\n    s_mov_b32 s58, s25\n")
    return s

if __name__ == "__main__":
    kw = {}
    out = sys.argv[1]
    for a in sys.argv[2:]:
        k, v = a.split("=")
        try: v = int(v)
        except ValueError:
            try: v = float(v)
            except ValueError: pass
        kw[k] = v
    open(out, "w").write(gen(**kw))
```

```python
import sys

def gen(DLO=18, DHI=22, DINIT=20, POL="nt", STAMP=0, SLEEP=1, PRIO=3, MIMIC=1, CTL=1, CK0=8, CKI=8, NCK=15, STATIC=0, CSLEEP=3, RMAP=0, CMODE=6, LAG=4, GAIN=2.0, DMID=20.0, WIN=400, STPOL="sc0 sc1", LDPOL="", NOST=0, NOLD=0, DBG=1, PUB=1, FIXD=0, STRIDE=128, MINC=4, NPUB=32, ROT=0, ORD=0, PAT=1, KVI=0, PB="012", JB="", SB="", MAP="", HP=0, EARLY=0, PFV=0):
    NC = 4
    SLOTB = 16384
    RING = 8 * SLOTB
    SCR = RING
    ZSC = SCR + 24576
    FLG = ZSC + 4096
    F_FULL, F_FREE, F_DONE = FLG, FLG + 256, FLG + 256 + 1024
    F_CTL = FLG + 2304
    LDS = FLG + 2304 + 256
    assert LDS <= 163840
    NT = 128
    pol = (" " + POL) if POL else ""
    L = []; A = L.append
    vKoff, vVoff, vKad, vVad = 4, 8, 10, 14
    vOm, vK, vV, vAcc, vZ = 24, 40, 72, 104, 136
    vP, vS, vT, vPhi, vPq = 140, 148, 156, 172, 176
    vHalf, vOnes, vC1, vD = 180, 184, 188, 190
    vFl, vFa = 22, 23
    vX = 192
    NV = 200
    def vr(b, n): return f"v[{b}:{b+n-1}]"
    uid = [0]
    def lab(p):
        uid[0] += 1
        return f"L_{p}{uid[0]}"

    A(f"; @launch grid=(256,1,1) block=({384 if CTL==1 else 320},1,1) lds={LDS}")
    A('.amdgcn_target "amdgcn-amd-amdhsa--gfx950"')
    A(".text")
    A(".globl standalone__linear_kernel_rfa__sampling_kernel")
    A(".p2align 8")
    A(".type standalone__linear_kernel_rfa__sampling_kernel,@function")
    A("standalone__linear_kernel_rfa__sampling_kernel:")
    A("    s_cmp_ge_u32 s2, 256")
    A("    s_cbranch_scc1 L_done")
    A("    s_load_dwordx8 s[32:39], s[0:1], 0          ; q, k, v, omega")
    A("    s_load_dwordx4 s[40:43], s[0:1], 32")
    A("    s_load_dwordx2 s[46:47], s[0:1], 48         ; ws")
    if STAMP:
        A("    s_memrealtime s[48:49]")
    A("    v_readfirstlane_b32 s25, v0")
    A("    v_and_b32 v0, 63, v0                        ; lane")
    A("    v_and_b32 v1, 15, v0                        ; j")
    A("    v_lshrrev_b32 v2, 4, v0                     ; g")
    A("    s_lshr_b32 s25, s25, 6")
    A(f"    s_lshr_b32 s62, s2, {HP}")
    A(f"    s_lshl_b32 s62, s62, {HP+1}")
    A(f"    s_and_b32 s63, s2, {(1 << HP) - 1}")
    A(f"    s_or_b32 s62, s62, s63")
    A(f"    s_lshl_b32 s63, s62, 11")
    A(f"    s_lshl_b32 s62, s62, 19")
    A("    s_mov_b32 s59, 0x200000")
    if CTL == 1:
        A("    s_cmp_eq_u32 s25, 5")
        A("    s_cbranch_scc1 L_ctl")
    A("    s_cmp_lg_u32 s25, 0")
    A("    s_cbranch_scc1 L_consumer")

    if PRIO: A(f"    s_setprio {PRIO}")
    GSH = {0: 8, 1: 8, 2: 8, 3: 12, 4: 13}[PAT]
    MAP = str(MAP)
    if MAP != "":
        ML = [int(ch, 16) + 8 for ch in MAP.replace("m", "")]
        assert sorted(ML) == list(range(8, 19)), ML
        A("    v_and_b32 v22, 1, v2")
        A(f"    v_lshlrev_b32 v22, {ML[0]}, v22")
        A("    v_lshrrev_b32 v3, 1, v2")
        A(f"    v_lshl_or_b32 v22, v3, {ML[1]}, v22")
        A("    v_xor_b32 v3, v1, v2                        ; j ^ g")
    else:
        A("    v_xor_b32 v3, v1, v2                        ; j ^ g")
        A(f"    v_lshlrev_b32 v22, {GSH}, v2")
    for p in range(4):
        A(f"    v_xor_b32 v23, {4*p}, v3")
        A(f"    v_lshl_add_u32 v{vKoff+p}, v23, 4, v22")
    A("    v_lshlrev_b32 v23, 1, v2")
    A("    v_xor_b32 v3, v1, v23                       ; j ^ 2g")
    for p in range(2):
        A(f"    v_xor_b32 v23, {8*p}, v3")
        A(f"    v_lshl_add_u32 v{vVoff+p}, v23, 4, v22")
    A("    v_lshlrev_b32 v12, 2, v0                    ; lane*4")
    A(f"    v_add_u32 v12, {F_FULL}, v12")
    A("    v_mov_b32 v13, 0")
    for k in range(8):
        A(f"    ds_write_b32 v12, v13 offset:{256 + 256*k}")
    A("    v_mov_b32 v14, 0x80000000")
    A("    ds_write_b32 v12, v14")
    if STATIC == 1:
        A("    s_bfe_u32 s23, s2, 0x10003                  ; (wg>>3)&1")
        A(f"    s_mul_i32 s23, s23, {DHI-DLO}")
        A(f"    s_add_u32 s23, s23, {DLO}")
        A("    v_mov_b32 v14, s23")
    elif STATIC == 2:
        A("    s_and_b32 s23, s2, 1")
        A(f"    s_mul_i32 s23, s23, {DHI-DLO}")
        A(f"    s_add_u32 s23, s23, {DLO}")
        A("    v_mov_b32 v14, s23")
    else:
        A(f"    v_mov_b32 v14, {DINIT}")
    A(f"    ds_write_b32 v12, v14 offset:{F_CTL-F_FULL}")
    A("    v_and_b32 v15, 3, v0")
    A("    v_lshlrev_b32 v15, 8, v15")
    A(f"    v_add_u32 v15, {F_FREE}, v15")
    A(f"    v_mov_b32 v14, {F_CTL}")
    A("    v_cmp_eq_u32 vcc, 4, v0")
    A("    v_cndmask_b32 v15, v15, v14, vcc")
    A("    ds_read_b32 v16, v15")
    A("    s_waitcnt lgkmcnt(0)")
    if not EARLY:
        A("    s_barrier")
    A("    s_add_u32 s4, s34, s62")
    A("    s_addc_u32 s5, s35, 0")
    A("    s_and_b32 s5, s5, 0xffff")
    A(f"    s_mov_b32 s6, {(0x80000 << HP) + 0x80000}")
    A("    s_mov_b32 s7, 0x20000")
    A("    s_add_u32 s8, s36, s62")
    A("    s_addc_u32 s9, s37, 0")
    A("    s_and_b32 s9, s9, 0xffff")
    A(f"    s_mov_b32 s10, {(0x80000 << HP) + 0x80000}")
    A("    s_mov_b32 s11, 0x20000")
    A("    s_mov_b32 s20, 0                            ; x (tile)")
    PBL = [int(ch) for ch in str(PB).zfill(3)]
    RBL = [b for b in range(7) if b not in PBL]
    def pg(p): return sum(((p >> k) & 1) << (12 + PBL[k]) for k in range(3))
    if JB != "":
        JBL = [int(ch) + 10 for ch in str(JB).zfill(5)]
        SBL = [int(ch) + 10 for ch in str(SB).zfill(4)] if SB != "" else [b for b in range(10, 19) if b not in JBL]
        assert sorted(JBL + SBL) == list(range(10, 19))
        RBL = [b - 12 for b in SBL]
    if MAP != "":
        JBL = ML[2:7]; RBL = [b - 12 for b in ML[7:]]
    def offj(j):
        if MAP != "": return sum(((j >> k) & 1) << JBL[k] for k in range(5))
        if JB != "": return sum(((j >> k) & 1) << JBL[k] for k in range(5))
        if PAT == 1: return pg(j & 7) + (j >> 3) * 1024
        if PAT == 2: return pg(j & 7) + (((j >> 3) + (j & 7)) & 3) * 1024
        if PAT == 0: return (j >> 2) * 4096 + (j & 3) * 1024
        if PAT == 1: return (j & 7) * 4096 + (j >> 3) * 1024
        if PAT == 2: return (j & 7) * 4096 + (((j >> 3) + (j & 7)) & 3) * 1024
        if PAT == 3: return (j & 1) * 16384 + (j >> 1) * 256
        if PAT == 4: return (j & 1) * 4096 + (j >> 1) * 256
    gof = (lambda g: ((g & 1) << ML[0]) | ((g >> 1) << ML[1])) if MAP != "" else (lambda g: g << GSH)
    assert sorted(offj(j) + gof(g) + sum(((sv >> m) & 1) << (12 + RBL[m]) for m in range(4)) for j in range(32) for g in range(4) for sv in range(16)) == [256 * r for r in range(2048)]
    NS = NT // 4
    if ROT == 2:
        A("    s_lshr_b32 s19, s2, 4")
    elif ROT == 8:
        A("    s_lshr_b32 s19, s2, 3")
    else:
        A("    s_mov_b32 s19, 0")
    A("    s_and_b32 s19, s19, 15")
    def emit_off():
        A("    s_add_u32 s21, s20, s19")
        A("    s_and_b32 s21, s21, 15")
        if RBL == [3, 4, 5, 6] and HP == 0:
            A("    s_and_b32 s27, s20, 16")
            A("    s_or_b32 s21, s21, s27")
            A("    s_lshl_b32 s21, s21, 15")
        else:
            A("    s_and_b32 s27, s20, 16")
            A(f"    s_lshl_b32 s29, s27, {15 + HP}")
            for m in range(4):
                A(f"    s_bfe_u32 s27, s21, {1 << 16 | m}")
                A(f"    s_lshl_b32 s27, s27, {12 + RBL[m]}")
                A(f"    s_or_b32 s29, s29, s27")
            A("    s_mov_b32 s21, s29")
    A("    s_mov_b32 s20, 0")
    emit_off()
    A(f"    s_mov_b32 s22, 0x80000000")
    def dma(jj, D, wait):
        if KVI == 0:
            half = jj // 32; j = jj % 32
        elif KVI == 1:
            half = jj & 1; j = jj >> 1
        elif KVI == 2:
            half = (jj >> 3) & 1; j = (jj & 7) | ((jj >> 4) << 3)
        srd = "s[4:7]" if half == 0 else "s[8:11]"
        t = j >> 3; u = (j >> 2) & 1; i = j & 3
        A(f"    s_add_u32 m0, s26, {t*32768 + half*8192 + u*4096 + i*1024}")
        A(f"    s_add_u32 s30, s21, {offj(j)}")
        if wait:
            A(f"    s_waitcnt vmcnt({D-1})")
            if KVI == 0 and jj % 32 == (D - 1) % 32:
                c = (jj - (D - 1)) // 32
                A(f"    s_add_i32 s27, s24, {c}")
                A(f"    s_max_i32 s22, s22, s27")
                A(f"    v_mov_b32 v13, s22")
                A(f"    ds_write_b32 v12, v13")
            if KVI and jj == D - 1:
                A(f"    s_max_i32 s22, s22, s24")
                A(f"    v_mov_b32 v13, s22")
                A(f"    ds_write_b32 v12, v13")
            if jj == 56:
                A("    ds_read_b32 v16, v15")
        else:
            A("    s_nop 0")
        vo = (vKoff + i) if half == 0 else (vVoff + (i & 1))
        A(f"    buffer_load_dwordx4 v{vo}, {srd}, s30 offen{pol} lds")
    if PFV:
        A("    buffer_load_dword v19, v13, s[8:11], s21 offen")
    if EARLY:
        A("    s_mov_b32 s26, 0")
        A("    s_mov_b32 s24, 0")
        for jj in range(DINIT - 1):
            dma(jj, DINIT, False)
        if STAMP == 2:
            A("    s_memrealtime s[60:61]")
            A("    s_waitcnt lgkmcnt(0)")
            A("    v_writelane_b32 v17, s60, 0")
        A("    s_barrier")
        A(f"    s_branch L_enter")
    A(".p2align 6")
    A("L_ld:")
    A("    s_and_b32 s26, s20, 1")
    A("    s_lshl_b32 s26, s26, 14")
    A("    s_add_i32 s28, s20, -1")
    if STAMP == 2:
        A("    s_memrealtime s[60:61]")
    A("L_ld_chk:")
    A("    s_waitcnt lgkmcnt(0)")
    if STAMP == 2:
        A("    s_lshl_b32 m0, s20, 2")
        A("    s_bitcmp1_b32 s20, 4")
        A("    s_cbranch_scc1 L_st_hi")
        A("    v_writelane_b32 v17, s60, m0")
        A("    s_branch L_st_dn")
        A("L_st_hi:")
        A("    v_writelane_b32 v18, s60, m0")
        A("L_st_dn:")
    A("    v_cmp_gt_i32 vcc, s28, v16")
    A("    v_readlane_b32 s31, v16, 4")
    A("    s_lshl_b32 s24, s20, 1                      ; 2s")
    A("    s_nop 1")
    A("    s_and_b32 s27, vcc_lo, 15")
    A("    s_cbranch_scc0 L_ld_go")
    A("    s_sub_u32 s59, s59, 1")
    A("    s_cbranch_scc1 L_done")
    A("    ds_read_b32 v16, v15")
    A("    s_branch L_ld_chk")
    A("L_ld_go:")
    DS = list(range(DLO, DHI + 1))
    assert DHI <= 32
    for D in DS[:-1]:
        A(f"    s_cmp_le_u32 s31, {D}")
        A(f"    s_cbranch_scc1 L_var{D}")
    for D in reversed(DS):
        A(f"L_var{D}:")
        for jj in range(64):
            if EARLY and D == DINIT and jj == DINIT - 1:
                A("L_enter:")
            dma(jj, D, True)
        A("    s_add_u32 s20, s20, 1")
        emit_off()
        A(f"    s_cmp_lt_u32 s20, {NS}")
        A("    s_cbranch_scc1 L_ld")
        if D != DS[0]:
            A("    s_branch L_drain")
    A("L_drain:")
    for val in ((2 * NS - 1, 2 * NS) if KVI == 0 else (2 * NS,)):
        A(f"    s_waitcnt vmcnt({NS*64 - 32*val})")
        A(f"    s_max_i32 s22, s22, {val}")
        A(f"    v_mov_b32 v13, s22")
        A(f"    ds_write_b32 v12, v13")
    A("    s_waitcnt lgkmcnt(0)")
    if STAMP == 2:
        A("    s_mov_b32 s4, s46")
        A("    s_and_b32 s5, s47, 0xffff")
        A("    s_mov_b32 s6, 0x1000000")
        A("    s_mov_b32 s7, 0x20000")
        A("    s_lshl_b32 s20, s2, 9")
        A("    s_add_u32 s20, s20, 0x100000")
        A("    v_lshlrev_b32 v19, 2, v0")
        A("    buffer_store_dword v17, v19, s[4:7], s20 offen")
        A("    buffer_store_dword v18, v19, s[4:7], s20 offen offset:256")
    if STAMP:
        A("    s_branch L_stamp")
    else:
        A("    s_endpgm")

    if CTL == 1:
        import struct
        def f32(x): return "0x%08x" % struct.unpack("<I", struct.pack("<f", x))[0]
        def wait_full(sneed, tag):
            A(f"L_ck{tag}:")
            A("    ds_read_b32 v6, v4")
            A("    s_waitcnt lgkmcnt(0)")
            A("    v_readfirstlane_b32 s45, v6")
            A("    s_nop 1")
            A(f"    s_cmp_ge_i32 s45, {sneed}")
            A(f"    s_cbranch_scc1 L_ck{tag}_go")
            A("    s_sub_u32 s59, s59, 1")
            A("    s_cbranch_scc1 L_done")
            A(f"    s_sleep {CSLEEP}")
            A(f"    s_branch L_ck{tag}")
            A(f"L_ck{tag}_go:")
        ROWB = NPUB * STRIDE
        PSH = {64: 2, 32: 3, 16: 4, 8: 5}[NPUB]
        A("L_ctl:")
        A("    s_waitcnt lgkmcnt(0)")
        A("    s_barrier")
        A("    s_add_u32 s4, s46, 0x200000")
        A("    s_addc_u32 s5, s47, 0")
        if STAMP == 2 and DBG:
            A("    s_mov_b32 s8, s4")
            A("    s_and_b32 s9, s5, 0xffff")
            A("    s_mov_b32 s10, 0x100000")
            A("    s_mov_b32 s11, 0x20000")
        A(f"    v_mov_b32 v4, {F_FULL}")
        A(f"    v_mov_b32 v5, {F_CTL}")
        A(f"    s_lshr_b32 s26, s2, {PSH}                     ; l")
        A(f"    s_mul_i32 s33, s26, {STRIDE}")
        A(f"    s_xor_b32 s26, s26, s2")
        A(f"    s_and_b32 s32, s26, {(1 << PSH) - 1 if PSH <= 3 else 7}")
        if PSH > 3:
            A(f"    s_bfe_u32 s26, s2, {(PSH-3) << 16 | 3}")
            A("    s_or_b32 s32, s32, s26")
        A(f"    s_mov_b32 s20, {CK0//2}")
        A("    s_mov_b32 s44, 0")
        A(f"    s_mov_b32 s24, {NCK}")
        A(f"    s_mov_b32 s27, {f32(GAIN/100.0)}")
        A(f"    s_mov_b32 s28, {f32(DMID + 0.5)}")
        A(f"    s_mov_b32 s35, {2*WIN}")
        A("L_ckl:")
        wait_full("s20", "a")
        A("    s_memrealtime s[30:31]")
        A(f"    s_add_u32 s23, s20, {LAG//2}")
        A("    s_waitcnt lgkmcnt(0)")
        if not NOST:
            A("    s_cmp_lg_u32 s32, 0")
            A("    s_cbranch_scc1 L_ck_nopub")
            A("    s_mov_b32 s34, s30")
            A("    s_atomic_swap s34, s[4:5], s33")
            A("L_ck_nopub:")
        wait_full("s23", "b")
        if not NOLD:
            for l in range(NPUB):
                A(f"    s_load_dword s{64+l}, s[4:5], {l*STRIDE}")
        A(f"    s_sub_u32 s22, {WIN}, s30")
        A("    s_mov_b32 s25, 0                            ; sum")
        A("    s_mov_b32 s26, 0                            ; count")
        A("    s_waitcnt lgkmcnt(0)")
        for l in range(NPUB):
            A(f"    s_add_u32 s{64+l}, s{64+l}, s22")
            A(f"    s_cmp_lt_u32 s{64+l}, s35")
            A(f"    s_cselect_b32 s{64+l}, s{64+l}, 0")
            A(f"    s_addc_u32 s26, s26, 0")
            A(f"    s_add_u32 s25, s25, s{64+l}")
        A(f"    s_cmp_lt_u32 s26, {MINC}")
        A("    s_cbranch_scc1 L_ck_dbg")
        A(f"    s_mul_i32 s22, s26, {WIN}")
        A("    s_sub_i32 s25, s22, s25")
        A("    v_cvt_f32_i32 v10, s25")
        A("    v_cvt_f32_u32 v13, s26")
        A("    v_rcp_f32 v13, v13")
        A("    s_nop 0")
        A("    v_mul_f32 v10, v10, v13")
        A("    v_mul_f32 v10, s27, v10")
        A("    v_add_f32 v10, s28, v10")
        A("    v_cvt_i32_f32 v10, v10")
        A(f"    v_max_i32 v10, {DLO}, v10")
        A(f"    v_min_i32 v10, {DHI}, v10")
        if FIXD:
            A(f"    v_mov_b32 v10, {DINIT}")
        A("    ds_write_b32 v5, v10")
        A("L_ck_dbg:")
        if STAMP == 2 and DBG:
            A("    s_mov_b64 exec, 1")
            A("    s_lshl_b32 s25, s2, 6")
            A("    s_add_u32 s25, s25, s44")
            A("    s_add_u32 s25, s25, 0x80000")
            A("    v_mov_b32 v14, s25")
            A("    s_lshl_b32 s26, s26, 8")
            A("    v_or_b32 v13, s26, v10")
            A("    buffer_store_dword v13, v14, s[8:11], 0 offen")
            A("    s_mov_b64 exec, -1")
        A(f"    s_add_u32 s20, s20, {CKI//2}")
        A("    s_add_u32 s44, s44, 4")
        A(f"    s_add_u32 s4, s4, {ROWB}")
        A(f"    s_addc_u32 s5, s5, 0")
        A("    s_sub_u32 s24, s24, 1")
        A("    s_cmp_lg_u32 s24, 0")
        A("    s_cbranch_scc1 L_ckl")
        A("    s_waitcnt vmcnt(0) lgkmcnt(0)")
        A("    s_endpgm")

    A("L_consumer:")
    A("    s_sub_u32 s25, s25, 1                       ; c")
    A("    s_lshl_b32 s26, s25, 15")
    A("    v_lshlrev_b32 v22, 4, v2                    ; g*16")
    A("    v_lshl_add_u32 v23, v1, 8, v22              ; j*256 + g*16 (omega)")
    A("    v_and_b32 v3, 7, v1")
    A("    v_lshl_add_u32 v22, v3, 8, v22              ; (j&7)*256 + g*16 (q)")
    A("    s_waitcnt lgkmcnt(0)")
    A("    s_barrier")
    A("    s_add_u32 s12, s32, s63")
    A("    s_addc_u32 s13, s33, 0")
    A("    s_and_b32 s13, s13, 0xffff")
    A(f"    s_mov_b32 s14, {(2048 << HP) + 2048}")
    A("    s_mov_b32 s15, 0x20000")
    A(f"    s_mov_b32 s21, {2048 << HP}")
    A("    s_mov_b32 s16, s38")
    A("    s_and_b32 s17, s39, 0xffff")
    A("    s_mov_b32 s18, 4096")
    A("    s_mov_b32 s19, 0x20000")
    for t in range(4):
        A(f"    buffer_load_dwordx4 {vr(vOm+4*t,4)}, v23, s[16:19], 0 offen offset:{64*t}")
    for t in range(4):
        A(f"    buffer_load_dwordx4 {vr(vV+4*t,4)}, v22, s[12:15], 0 offen offset:{64*t}")
    for t in range(4):
        A(f"    buffer_load_dwordx4 {vr(vV+16+4*t,4)}, v22, s[12:15], s21 offen offset:{64*t}")
    A("    v_lshlrev_b32 v22, 8, v1                    ; j*256")
    A("    v_add_u32 v22, s26, v22")
    A("    v_xor_b32 v3, v1, v2                        ; j ^ g")
    for t in range(4):
        A(f"    v_xor_b32 v23, {4*t}, v3")
        A(f"    v_lshl_add_u32 v{vKad+t}, v23, 4, v22")
    A("    v_lshrrev_b32 v3, 2, v0                     ; 4g+r")
    A("    v_lshlrev_b32 v22, 8, v3                    ; row*256")
    A("    v_add_u32 v22, s26, v22")
    A("    v_and_b32 v23, 3, v0")
    A("    v_lshl_add_u32 v22, v23, 3, v22             ; + 8c4")
    A("    v_add_u32 v22, 8192, v22")
    A("    v_and_b32 v3, 7, v3                         ; s&7")
    A("    s_lshl_b32 s44, s25, 1                      ; 2c")
    for b in range(8):
        A(f"    s_add_u32 s45, s44, {b}")
        A(f"    s_and_b32 s45, s45, 7")
        A(f"    v_xor_b32 v23, s45, v3")
        A(f"    v_lshl_add_u32 v{vVad+b}, v23, 5, v22")
    A("    v_lshlrev_b32 v3, 4, v0                     ; lane*16")
    for k in range(1, 4):
        A(f"    s_add_u32 s45, s25, {k}")
        A(f"    s_and_b32 s45, s45, 3")
        A(f"    s_mul_i32 s45, s45, 6144")
        A(f"    s_add_u32 s45, s45, {SCR + (k-1)*2048}")
        A(f"    v_add_u32 v{vX+k-1}, s45, v3")
    A(f"    s_mul_i32 s45, s25, 6144")
    A(f"    s_add_u32 s45, s45, {SCR}")
    A(f"    v_add_u32 v{vX+3}, s45, v3")
    A(f"    s_lshl_b32 s45, s25, 10")
    A(f"    s_add_u32 s45, s45, {ZSC}")
    A(f"    v_add_u32 v{vX+4}, s45, v3")
    A(f"    v_add_u32 v{vX+5}, {ZSC}, v3")
    A("    v_lshlrev_b32 v3, 2, v0")
    A("    s_lshl_b32 s45, s25, 8")
    A(f"    s_add_u32 s45, s45, {F_FREE}")
    A(f"    v_add_u32 v{vX+6}, s45, v3")
    A("    v_and_b32 v3, 3, v0")
    A("    v_lshlrev_b32 v3, 8, v3")
    A(f"    v_add_u32 v{vX+7}, {F_DONE}, v3")
    A(f"    v_mov_b32 v{vFa}, {F_FULL}")
    A("    s_mov_b32 s27, 0xffff0000")
    A("    s_mov_b32 s28, 0x3e9837f0                   ; 128^-0.25 (f32)")
    A("    s_mov_b32 s29, 0x3e9837f0")
    A("    s_mov_b32 s30, 0x3fb8aa3b                   ; log2(e)")
    A("    s_mov_b32 s31, 0x3e800000                   ; 0.25")
    A(f"    v_mov_b32 v{vHalf}, 0.5")
    for i in range(4):
        A(f"    v_mov_b32 v{vOnes+i}, 0x3f803f80")
    A(f"    v_mov_b32 v{vC1}, 0x358637bd               ; 1e-6")

    def scale_regs(base, n, dacc):
        for i in range(n):
            t = vT + 2 * (i % 4)
            A(f"    v_lshlrev_b32 v{t}, 16, v{base+i}")
            A(f"    v_and_b32 v{t+1}, s27, v{base+i}")
            A(f"    v_pk_mul_f32 {vr(t,2)}, {vr(t,2)}, s[28:29]")
            A(f"    v_cvt_pk_bf16_f32 v{base+i}, v{t}, v{t+1}")
            if i == 0:
                A(f"    v_dot2_f32_bf16 v{dacc}, v{base+i}, v{base+i}, 0")
            else:
                A(f"    v_dot2_f32_bf16 v{dacc}, v{base+i}, v{base+i}, v{dacc}")

    def feat(P, S, O):
        t = vT + 8
        A(f"    v_cvt_pk_bf16_f32 v{t}, v{P}, v{P+1}")
        A(f"    v_cvt_pk_bf16_f32 v{t+1}, v{P+2}, v{P+3}")
        A(f"    v_cvt_pk_bf16_f32 v{t+2}, v{S}, v{S+1}")
        A(f"    v_cvt_pk_bf16_f32 v{t+3}, v{S+2}, v{S+3}")
        def unpack(dst, src0, src1):
            A(f"    v_lshlrev_b32 v{dst}, 16, v{src0}")
            A(f"    v_and_b32 v{dst+1}, s27, v{src0}")
            A(f"    v_lshlrev_b32 v{dst+2}, 16, v{src1}")
            A(f"    v_and_b32 v{dst+3}, s27, v{src1}")
        unpack(P, t, t + 1)
        unpack(S, t + 2, t + 3)
        for r in range(4):
            A(f"    v_sub_f32 v{P+r}, v{P+r}, v{S+r}")
        A(f"    v_cvt_pk_bf16_f32 v{t}, v{P}, v{P+1}")
        A(f"    v_cvt_pk_bf16_f32 v{t+1}, v{P+2}, v{P+3}")
        unpack(P, t, t + 1)
        for r in range(4):
            A(f"    v_mul_f32 v{P+r}, s30, v{P+r}")
        for r in range(4):
            A(f"    v_exp_f32 v{P+r}, v{P+r}")
        A("    s_nop 0")
        A(f"    v_cvt_pk_bf16_f32 v{t}, v{P}, v{P+1}")
        A(f"    v_cvt_pk_bf16_f32 v{t+1}, v{P+2}, v{P+3}")
        unpack(P, t, t + 1)
        for r in range(4):
            A(f"    v_fma_f32 v{P+r}, v{P+r}, s31, v{vC1}")
        A(f"    v_cvt_pk_bf16_f32 v{O}, v{P}, v{P+1}")
        A(f"    v_cvt_pk_bf16_f32 v{O+1}, v{P+2}, v{P+3}")

    A("    s_waitcnt vmcnt(0)")
    for h in range(2):
        scale_regs(vV + 16 * h, 16, vD)
        A("    s_nop 2")
        for t in range(4):
            c = "0" if t == 0 else vr(vP, 4)
            A(f"    v_mfma_f32_16x16x32_bf16 {vr(vP,4)}, {vr(vOm+4*t,4)}, {vr(vV+16*h+4*t,4)}, {c}")
        A(f"    v_mfma_f32_16x16x4_f32 {vr(vS,4)}, v{vHalf}, v{vD}, 0")
        A("    s_nop 7")
        A("    s_nop 7")
        feat(vP, vS, vPq + 2 * h)

    def poll_full(sneed):
        l = lab("pf"); g = lab("pg")
        A(f"{l}:")
        A(f"    ds_read_b32 v{vFl}, v{vFa}")
        A("    s_waitcnt lgkmcnt(0)")
        A(f"    v_readfirstlane_b32 s45, v{vFl}")
        A("    s_nop 1")
        A(f"    s_cmp_ge_i32 s45, {sneed}")
        A(f"    s_cbranch_scc1 {g}")
        A("    s_sub_u32 s59, s59, 1")
        A("    s_cbranch_scc1 L_done")
        if SLEEP: A(f"    s_sleep {SLEEP}")
        A(f"    s_branch {l}")
        A(f"{g}:")

    A("    s_add_u32 s12, s40, s63")
    A("    s_addc_u32 s13, s41, 0")
    A("    s_and_b32 s13, s13, 0xffff")
    A("    s_mov_b32 s14, 2048")
    A("    s_mov_b32 s20, 1                            ; K needed: 2s+1")
    A("    s_mov_b32 s22, 0")
    A("    s_mov_b32 s23, 1                            ; epoch")
    A("L_bh:")
    for i in range(36):
        A(f"    v_mov_b32 v{vAcc+i}, 0")
    A("    s_mov_b32 s24, 16")
    A(".p2align 6")
    A("L_tile:")
    poll_full("s20")
    for u in range(2):
        for t in range(4):
            A(f"    ds_read_b128 {vr(vK+16*u+4*t,4)}, v{vKad+t} offset:{u*4096}")
    A("    s_add_u32 s21, s20, 1")
    A("    s_waitcnt lgkmcnt(0)")
    for u in range(2):
        scale_regs(vK + 16 * u, 16, vD + u)
    A("    s_nop 2")
    for u in range(2):
        for t in range(4):
            c = "0" if t == 0 else vr(vP + 4 * u, 4)
            A(f"    v_mfma_f32_16x16x32_bf16 {vr(vP+4*u,4)}, {vr(vK+16*u+4*t,4)}, {vr(vOm+4*t,4)}, {c}")
        A(f"    v_mfma_f32_16x16x4_f32 {vr(vS+4*u,4)}, v{vD+u}, v{vHalf}, 0")
    A("    s_nop 7")
    A("    s_nop 7")
    feat(vP, vS, vPhi)
    feat(vP + 4, vS + 4, vPhi + 2)
    poll_full("s21")
    for bb in range(8):
        for u in range(2):
            A(f"    ds_read_b64_tr_b16 {vr(vV+4*bb+2*u,2)}, v{vVad+bb} offset:{u*4096}")
    A("    s_add_u32 s22, s22, 1")
    A(f"    v_mov_b32 v{vFl}, s22")
    A("    s_waitcnt lgkmcnt(0)")
    A(f"    ds_write_b32 v{vX+6}, v{vFl}                ; free")
    for bb in range(8):
        A(f"    v_mfma_f32_16x16x32_bf16 {vr(vAcc+4*bb,4)}, {vr(vPhi,4)}, {vr(vV+4*bb,4)}, {vr(vAcc+4*bb,4)}")
    A(f"    v_mfma_f32_16x16x32_bf16 {vr(vZ,4)}, {vr(vPhi,4)}, {vr(vOnes,4)}, {vr(vZ,4)}")
    for t in range(4):
        A(f"    v_xor_b32 v{vKad+t}, 0x4000, v{vKad+t}")
    for b in range(8):
        A(f"    v_xor_b32 v{vVad+b}, 0x4000, v{vVad+b}")
    A("    s_add_u32 s20, s20, 2")
    A("    s_sub_u32 s24, s24, 1")
    A("    s_cmp_lg_u32 s24, 0")
    A("    s_cbranch_scc1 L_tile")

    A("    s_nop 7")
    for k in range(1, 4):
        for bb in range(2):
            A(f"    ds_write_b128 v{vX+k-1}, {vr(vAcc+8*k+4*bb,4)} offset:{bb*1024}")
    A(f"    ds_write_b128 v{vX+4}, {vr(vZ,4)}")
    A(f"    v_mov_b32 v{vFl}, s23")
    A("    s_waitcnt lgkmcnt(0)")
    A(f"    ds_write_b32 v{vX+6}, v{vFl} offset:1024")
    l = lab("pd")
    A(f"{l}:")
    A(f"    ds_read_b32 v{vFl}, v{vX+7}")
    A("    s_waitcnt lgkmcnt(0)")
    A("    s_sub_u32 s59, s59, 1")
    A("    s_cbranch_scc1 L_done")
    A(f"    v_cmp_gt_u32 vcc, s23, v{vFl}")
    A(f"    s_cbranch_vccnz {l}")
    for k in range(1, 4):
        for bb in range(2):
            A(f"    ds_read_b128 {vr(vK+8*(k-1)+4*bb,4)}, v{vX+3} offset:{(k-1)*2048+bb*1024}")
    for w in range(4):
        A(f"    ds_read_b128 {vr(vV+4*w,4)}, v{vX+5} offset:{w*1024}")
    A("    v_lshlrev_b32 v3, 8, v1                     ; j*256")
    A("    v_lshl_add_u32 v3, v2, 3, v3                ; + g*8")
    A("    s_lshl_b32 s44, s25, 6")
    A("    v_add_u32 v3, s44, v3")
    A("    s_waitcnt lgkmcnt(0)")
    for k in range(1, 4):
        for bb in range(2):
            for r in range(4):
                A(f"    v_add_f32 v{vAcc+4*bb+r}, v{vAcc+4*bb+r}, v{vK+8*(k-1)+4*bb+r}")
    for w in range(1, 4):
        for r in range(4):
            A(f"    v_add_f32 v{vV+r}, v{vV+r}, v{vV+4*w+r}")
    for bb in range(2):
        A(f"    v_cvt_pk_bf16_f32 v{vT+2*bb}, v{vAcc+4*bb}, v{vAcc+4*bb+1}")
        A(f"    v_cvt_pk_bf16_f32 v{vT+2*bb+1}, v{vAcc+4*bb+2}, v{vAcc+4*bb+3}")
    A(f"    v_cvt_pk_bf16_f32 v{vT+8}, v{vV}, v{vV+1}")
    A(f"    v_cvt_pk_bf16_f32 v{vT+9}, v{vV+2}, v{vV+3}")
    A("    s_nop 1")
    for bb in range(2):
        A(f"    v_mfma_f32_16x16x16_bf16 {vr(vAcc+4*bb,4)}, {vr(vT+2*bb,2)}, {vr(vPq,2)}, 0")
    A(f"    v_mfma_f32_16x16x16_bf16 {vr(vZ,4)}, {vr(vT+8,2)}, {vr(vPq,2)}, 0")
    A("    s_nop 7")
    A("    s_nop 1")
    A(f"    v_cvt_pk_bf16_f32 v{vT}, v{vZ}, v{vZ}")
    A(f"    v_and_b32 v{vT}, s27, v{vT}")
    A(f"    v_add_f32 v{vT}, v{vT}, v{vC1}")
    A(f"    v_cvt_pk_bf16_f32 v{vT}, v{vT}, v{vT}")
    A(f"    v_and_b32 v{vT}, s27, v{vT}               ; den")
    A(f"    v_rcp_f32 v{vT+1}, v{vT}")
    for bb in range(2):
        a = vAcc + 4 * bb
        A(f"    v_cvt_pk_bf16_f32 v{vT+2}, v{a}, v{a+1}")
        A(f"    v_cvt_pk_bf16_f32 v{vT+3}, v{a+2}, v{a+3}")
        A(f"    v_lshlrev_b32 v{a}, 16, v{vT+2}")
        A(f"    v_and_b32 v{a+1}, s27, v{vT+2}")
        A(f"    v_lshlrev_b32 v{a+2}, 16, v{vT+3}")
        A(f"    v_and_b32 v{a+3}, s27, v{vT+3}")
        for r in range(4):
            A(f"    v_mul_f32 v{vT+4+r}, v{a+r}, v{vT+1}")
        for r in range(4):
            A(f"    v_fma_f32 v{vT+8+r}, -v{vT+4+r}, v{vT}, v{a+r}")
        for r in range(4):
            A(f"    v_fma_f32 v{vT+4+r}, v{vT+8+r}, v{vT+1}, v{vT+4+r}")
        for r in range(4):
            A(f"    v_div_fixup_f32 v{vT+4+r}, v{vT+4+r}, v{vT}, v{a+r}")
        A(f"    v_cvt_pk_bf16_f32 v{a}, v{vT+4}, v{vT+5}")
        A(f"    v_cvt_pk_bf16_f32 v{a+1}, v{vT+6}, v{vT+7}")
        A(f"    buffer_store_dwordx2 {vr(a,2)}, v3, s[12:15], 0 offen offset:{bb*32}")
    A("    s_cmp_eq_u32 s23, 2")
    A("    s_cbranch_scc1 L_fin")
    A("    s_mov_b32 s23, 2")
    A(f"    s_add_u32 s12, s12, {2048 << HP}")
    A("    s_addc_u32 s13, s13, 0")
    A(f"    v_mov_b32 v{vPq}, v{vPq+2}")
    A(f"    v_mov_b32 v{vPq+1}, v{vPq+3}")
    A("    s_branch L_bh")
    A("L_fin:")
    if STAMP:
        A("L_stamp:")
        A("    s_waitcnt vmcnt(0)")
        A("    s_memrealtime s[50:51]")
        A("    s_getreg_b32 s52, hwreg(HW_REG_XCC_ID)")
        A("    s_getreg_b32 s53, hwreg(HW_REG_HW_ID)")
        A("    s_waitcnt lgkmcnt(0)")
        A("    s_mov_b32 s44, s46")
        A("    s_and_b32 s45, s47, 0xffff")
        A("    s_mov_b32 s46, 0x100000")
        A("    s_mov_b32 s47, 0x20000")
        for i, s in enumerate((48, 49, 50, 51, 52, 53)):
            A(f"    v_mov_b32 v{40+i}, s{s}")
        A("    v_readfirstlane_b32 s55, v200") if False else None
        A(f"    s_mul_i32 s54, s2, 5")
        A("    s_add_u32 s54, s54, s58")
        A("    s_lshl_b32 s54, s54, 5")
        A("    v_mov_b32 v46, s54")
        A("    v_cmp_eq_u32 vcc, 0, v0")
        A("    s_and_saveexec_b64 s[56:57], vcc")
        A("    buffer_store_dwordx4 v[40:43], v46, s[44:47], 0 offen")
        A("    buffer_store_dwordx2 v[44:45], v46, s[44:47], 0 offen offset:16")
        A("    s_mov_b64 exec, s[56:57]")
    A("L_done:")
    A("    s_endpgm")
    A('.section .rodata,"a"')
    A(".p2align 6")
    A(".amdhsa_kernel standalone__linear_kernel_rfa__sampling_kernel")
    A(f"  .amdhsa_next_free_vgpr {NV}")
    A("  .amdhsa_next_free_sgpr 96")
    A(f"  .amdhsa_accum_offset {NV}")
    A("  .amdhsa_group_segment_fixed_size 0")
    A("  .amdhsa_kernarg_size 56")
    A("  .amdhsa_user_sgpr_count 2")
    A("  .amdhsa_user_sgpr_kernarg_segment_ptr 1")
    A("  .amdhsa_system_sgpr_workgroup_id_x 1")
    A("  .amdhsa_float_denorm_mode_32 3")
    A(".end_amdhsa_kernel")
    L2 = [x for x in L if x is not None]
    s = "\n".join(L2) + "\n"
    if STAMP:
        s = s.replace("    s_lshr_b32 s25, s25, 6                      ; wave id\n", "    s_lshr_b32 s25, s25, 6                      ; wave id\n    s_mov_b32 s58, s25\n")
    return s

if __name__ == "__main__":
    kw = {}
    out = sys.argv[1]
    for a in sys.argv[2:]:
        k, v = a.split("=")
        try: v = int(v)
        except ValueError:
            try: v = float(v)
            except ValueError: pass
        kw[k] = v
    open(out, "w").write(gen(**kw))
```

```python
import sys

def gen(DLO=18, DHI=22, DINIT=20, POL="nt", STAMP=0, SLEEP=1, PRIO=3, MIMIC=1, CTL=1, CK0=8, CKI=8, NCK=15, STATIC=0, CSLEEP=3, RMAP=0, CMODE=6, LAG=4, GAIN=2.0, DMID=20.0, WIN=400, STPOL="sc0 sc1", LDPOL="", NOST=0, NOLD=0, DBG=1, PUB=1, FIXD=0, STRIDE=128, MINC=4, NPUB=32, ROT=0, ORD=0, PAT=1, KVI=0, PB="012", JB="", SB="", MAP="", HP=0, EARLY=0, PFV=0, KB=0.0, DREF=20.5, KI=0.0, IMAX=3.0, LATE=0, GLATE=3.0, ST16=0, STP=""):
    NC = 4
    SLOTB = 16384
    RING = 8 * SLOTB
    SCR = RING
    ZSC = SCR + 24576
    FLG = ZSC + 4096
    F_FULL, F_FREE, F_DONE = FLG, FLG + 256, FLG + 256 + 1024
    F_CTL = FLG + 2304
    LDS = FLG + 2304 + 256
    assert LDS <= 163840
    NT = 128
    pol = (" " + POL) if POL else ""
    L = []; A = L.append
    vKoff, vVoff, vKad, vVad = 4, 8, 10, 14
    vOm, vK, vV, vAcc, vZ = 24, 40, 72, 104, 136
    vP, vS, vT, vPhi, vPq = 140, 148, 156, 172, 176
    vHalf, vOnes, vC1, vD = 180, 184, 188, 190
    vFl, vFa = 22, 23
    vX = 192
    NV = 200
    def vr(b, n): return f"v[{b}:{b+n-1}]"
    uid = [0]
    def lab(p):
        uid[0] += 1
        return f"L_{p}{uid[0]}"

    A(f"; @launch grid=(256,1,1) block=({384 if CTL==1 else 320},1,1) lds={LDS}")
    A('.amdgcn_target "amdgcn-amd-amdhsa--gfx950"')
    A(".text")
    A(".globl standalone__linear_kernel_rfa__sampling_kernel")
    A(".p2align 8")
    A(".type standalone__linear_kernel_rfa__sampling_kernel,@function")
    A("standalone__linear_kernel_rfa__sampling_kernel:")
    A("    s_cmp_ge_u32 s2, 256")
    A("    s_cbranch_scc1 L_done")
    A("    s_load_dwordx8 s[32:39], s[0:1], 0          ; q, k, v, omega")
    A("    s_load_dwordx4 s[40:43], s[0:1], 32")
    A("    s_load_dwordx2 s[46:47], s[0:1], 48         ; ws")
    if STAMP:
        A("    s_memrealtime s[48:49]")
    A("    v_readfirstlane_b32 s25, v0")
    A("    v_and_b32 v0, 63, v0                        ; lane")
    A("    v_and_b32 v1, 15, v0                        ; j")
    A("    v_lshrrev_b32 v2, 4, v0                     ; g")
    A("    s_lshr_b32 s25, s25, 6")
    A(f"    s_lshr_b32 s62, s2, {HP}")
    A(f"    s_lshl_b32 s62, s62, {HP+1}")
    A(f"    s_and_b32 s63, s2, {(1 << HP) - 1}")
    A(f"    s_or_b32 s62, s62, s63")
    A(f"    s_lshl_b32 s63, s62, 11")
    A(f"    s_lshl_b32 s62, s62, 19")
    A("    s_mov_b32 s59, 0x200000")
    if CTL == 1:
        A("    s_cmp_eq_u32 s25, 5")
        A("    s_cbranch_scc1 L_ctl")
    A("    s_cmp_lg_u32 s25, 0")
    A("    s_cbranch_scc1 L_consumer")

    if PRIO: A(f"    s_setprio {PRIO}")
    GSH = {0: 8, 1: 8, 2: 8, 3: 12, 4: 13}[PAT]
    MAP = str(MAP)
    if MAP != "":
        ML = [int(ch, 16) + 8 for ch in MAP.replace("m", "")]
        assert sorted(ML) == list(range(8, 19)), ML
        A("    v_and_b32 v22, 1, v2")
        A(f"    v_lshlrev_b32 v22, {ML[0]}, v22")
        A("    v_lshrrev_b32 v3, 1, v2")
        A(f"    v_lshl_or_b32 v22, v3, {ML[1]}, v22")
        A("    v_xor_b32 v3, v1, v2                        ; j ^ g")
    else:
        A("    v_xor_b32 v3, v1, v2                        ; j ^ g")
        A(f"    v_lshlrev_b32 v22, {GSH}, v2")
    for p in range(4):
        A(f"    v_xor_b32 v23, {4*p}, v3")
        A(f"    v_lshl_add_u32 v{vKoff+p}, v23, 4, v22")
    A("    v_lshlrev_b32 v23, 1, v2")
    A("    v_xor_b32 v3, v1, v23                       ; j ^ 2g")
    for p in range(2):
        A(f"    v_xor_b32 v23, {8*p}, v3")
        A(f"    v_lshl_add_u32 v{vVoff+p}, v23, 4, v22")
    A("    v_lshlrev_b32 v12, 2, v0                    ; lane*4")
    A(f"    v_add_u32 v12, {F_FULL}, v12")
    A("    v_mov_b32 v13, 0")
    for k in range(8):
        A(f"    ds_write_b32 v12, v13 offset:{256 + 256*k}")
    A("    v_mov_b32 v14, 0x80000000")
    A("    ds_write_b32 v12, v14")
    if STATIC == 1:
        A("    s_bfe_u32 s23, s2, 0x10003                  ; (wg>>3)&1")
        A(f"    s_mul_i32 s23, s23, {DHI-DLO}")
        A(f"    s_add_u32 s23, s23, {DLO}")
        A("    v_mov_b32 v14, s23")
    elif STATIC == 2:
        A("    s_and_b32 s23, s2, 1")
        A(f"    s_mul_i32 s23, s23, {DHI-DLO}")
        A(f"    s_add_u32 s23, s23, {DLO}")
        A("    v_mov_b32 v14, s23")
    else:
        A(f"    v_mov_b32 v14, {DINIT}")
    A(f"    ds_write_b32 v12, v14 offset:{F_CTL-F_FULL}")
    A("    v_and_b32 v15, 3, v0")
    A("    v_lshlrev_b32 v15, 8, v15")
    A(f"    v_add_u32 v15, {F_FREE}, v15")
    A(f"    v_mov_b32 v14, {F_CTL}")
    A("    v_cmp_eq_u32 vcc, 4, v0")
    A("    v_cndmask_b32 v15, v15, v14, vcc")
    A("    ds_read_b32 v16, v15")
    A("    s_waitcnt lgkmcnt(0)")
    if not EARLY:
        A("    s_barrier")
    A("    s_add_u32 s4, s34, s62")
    A("    s_addc_u32 s5, s35, 0")
    A("    s_and_b32 s5, s5, 0xffff")
    A(f"    s_mov_b32 s6, {(0x80000 << HP) + 0x80000}")
    A("    s_mov_b32 s7, 0x20000")
    A("    s_add_u32 s8, s36, s62")
    A("    s_addc_u32 s9, s37, 0")
    A("    s_and_b32 s9, s9, 0xffff")
    A(f"    s_mov_b32 s10, {(0x80000 << HP) + 0x80000}")
    A("    s_mov_b32 s11, 0x20000")
    A("    s_mov_b32 s20, 0                            ; x (tile)")
    PBL = [int(ch) for ch in str(PB).zfill(3)]
    RBL = [b for b in range(7) if b not in PBL]
    def pg(p): return sum(((p >> k) & 1) << (12 + PBL[k]) for k in range(3))
    if JB != "":
        JBL = [int(ch) + 10 for ch in str(JB).zfill(5)]
        SBL = [int(ch) + 10 for ch in str(SB).zfill(4)] if SB != "" else [b for b in range(10, 19) if b not in JBL]
        assert sorted(JBL + SBL) == list(range(10, 19))
        RBL = [b - 12 for b in SBL]
    if MAP != "":
        JBL = ML[2:7]; RBL = [b - 12 for b in ML[7:]]
    def offj(j):
        if MAP != "": return sum(((j >> k) & 1) << JBL[k] for k in range(5))
        if JB != "": return sum(((j >> k) & 1) << JBL[k] for k in range(5))
        if PAT == 1: return pg(j & 7) + (j >> 3) * 1024
        if PAT == 2: return pg(j & 7) + (((j >> 3) + (j & 7)) & 3) * 1024
        if PAT == 0: return (j >> 2) * 4096 + (j & 3) * 1024
        if PAT == 1: return (j & 7) * 4096 + (j >> 3) * 1024
        if PAT == 2: return (j & 7) * 4096 + (((j >> 3) + (j & 7)) & 3) * 1024
        if PAT == 3: return (j & 1) * 16384 + (j >> 1) * 256
        if PAT == 4: return (j & 1) * 4096 + (j >> 1) * 256
    gof = (lambda g: ((g & 1) << ML[0]) | ((g >> 1) << ML[1])) if MAP != "" else (lambda g: g << GSH)
    assert sorted(offj(j) + gof(g) + sum(((sv >> m) & 1) << (12 + RBL[m]) for m in range(4)) for j in range(32) for g in range(4) for sv in range(16)) == [256 * r for r in range(2048)]
    NS = NT // 4
    if ROT == 2:
        A("    s_lshr_b32 s19, s2, 4")
    elif ROT == 8:
        A("    s_lshr_b32 s19, s2, 3")
    else:
        A("    s_mov_b32 s19, 0")
    A("    s_and_b32 s19, s19, 15")
    def emit_off():
        A("    s_add_u32 s21, s20, s19")
        A("    s_and_b32 s21, s21, 15")
        if RBL == [3, 4, 5, 6] and HP == 0:
            A("    s_and_b32 s27, s20, 16")
            A("    s_or_b32 s21, s21, s27")
            A("    s_lshl_b32 s21, s21, 15")
        else:
            A("    s_and_b32 s27, s20, 16")
            A(f"    s_lshl_b32 s29, s27, {15 + HP}")
            for m in range(4):
                A(f"    s_bfe_u32 s27, s21, {1 << 16 | m}")
                A(f"    s_lshl_b32 s27, s27, {12 + RBL[m]}")
                A(f"    s_or_b32 s29, s29, s27")
            A("    s_mov_b32 s21, s29")
    A("    s_mov_b32 s20, 0")
    emit_off()
    A(f"    s_mov_b32 s22, 0x80000000")
    def dma(jj, D, wait):
        if KVI == 0:
            half = jj // 32; j = jj % 32
        elif KVI == 1:
            half = jj & 1; j = jj >> 1
        elif KVI == 2:
            half = (jj >> 3) & 1; j = (jj & 7) | ((jj >> 4) << 3)
        srd = "s[4:7]" if half == 0 else "s[8:11]"
        t = j >> 3; u = (j >> 2) & 1; i = j & 3
        A(f"    s_add_u32 m0, s26, {t*32768 + half*8192 + u*4096 + i*1024}")
        A(f"    s_add_u32 s30, s21, {offj(j)}")
        if wait:
            A(f"    s_waitcnt vmcnt({D-1})")
            if KVI == 0 and jj % 32 == (D - 1) % 32:
                c = (jj - (D - 1)) // 32
                A(f"    s_add_i32 s27, s24, {c}")
                A(f"    s_max_i32 s22, s22, s27")
                A(f"    v_mov_b32 v13, s22")
                A(f"    ds_write_b32 v12, v13")
            if KVI and jj == D - 1:
                A(f"    s_max_i32 s22, s22, s24")
                A(f"    v_mov_b32 v13, s22")
                A(f"    ds_write_b32 v12, v13")
            if jj == 56:
                A("    ds_read_b32 v16, v15")
        else:
            A("    s_nop 0")
        vo = (vKoff + i) if half == 0 else (vVoff + (i & 1))
        A(f"    buffer_load_dwordx4 v{vo}, {srd}, s30 offen{pol} lds")
    if PFV:
        A("    buffer_load_dword v19, v13, s[8:11], s21 offen")
    if EARLY:
        A("    s_mov_b32 s26, 0")
        A("    s_mov_b32 s24, 0")
        for jj in range(DINIT - 1):
            dma(jj, DINIT, False)
        if STAMP == 2:
            A("    s_memrealtime s[60:61]")
            A("    s_waitcnt lgkmcnt(0)")
            A("    v_writelane_b32 v17, s60, 0")
        A("    s_barrier")
        A(f"    s_branch L_enter")
    A(".p2align 6")
    A("L_ld:")
    A("    s_and_b32 s26, s20, 1")
    A("    s_lshl_b32 s26, s26, 14")
    A("    s_add_i32 s28, s20, -1")
    if STAMP == 2:
        A("    s_memrealtime s[60:61]")
    A("L_ld_chk:")
    A("    s_waitcnt lgkmcnt(0)")
    if STAMP == 2:
        A("    s_lshl_b32 m0, s20, 2")
        A("    s_bitcmp1_b32 s20, 4")
        A("    s_cbranch_scc1 L_st_hi")
        A("    v_writelane_b32 v17, s60, m0")
        A("    s_branch L_st_dn")
        A("L_st_hi:")
        A("    v_writelane_b32 v18, s60, m0")
        A("L_st_dn:")
    A("    v_cmp_gt_i32 vcc, s28, v16")
    A("    v_readlane_b32 s31, v16, 4")
    A("    s_lshl_b32 s24, s20, 1                      ; 2s")
    A("    s_nop 1")
    A("    s_and_b32 s27, vcc_lo, 15")
    A("    s_cbranch_scc0 L_ld_go")
    A("    s_sub_u32 s59, s59, 1")
    A("    s_cbranch_scc1 L_done")
    A("    ds_read_b32 v16, v15")
    A("    s_branch L_ld_chk")
    A("L_ld_go:")
    DS = list(range(DLO, DHI + 1))
    assert DHI <= 32
    for D in DS[:-1]:
        A(f"    s_cmp_le_u32 s31, {D}")
        A(f"    s_cbranch_scc1 L_var{D}")
    for D in reversed(DS):
        A(f"L_var{D}:")
        for jj in range(64):
            if EARLY and D == DINIT and jj == DINIT - 1:
                A("L_enter:")
            dma(jj, D, True)
        A("    s_add_u32 s20, s20, 1")
        emit_off()
        A(f"    s_cmp_lt_u32 s20, {NS}")
        A("    s_cbranch_scc1 L_ld")
        if D != DS[0]:
            A("    s_branch L_drain")
    A("L_drain:")
    for val in ((2 * NS - 1, 2 * NS) if KVI == 0 else (2 * NS,)):
        A(f"    s_waitcnt vmcnt({NS*64 - 32*val})")
        A(f"    s_max_i32 s22, s22, {val}")
        A(f"    v_mov_b32 v13, s22")
        A(f"    ds_write_b32 v12, v13")
    A("    s_waitcnt lgkmcnt(0)")
    if STAMP == 2:
        A("    s_mov_b32 s4, s46")
        A("    s_and_b32 s5, s47, 0xffff")
        A("    s_mov_b32 s6, 0x1000000")
        A("    s_mov_b32 s7, 0x20000")
        A("    s_lshl_b32 s20, s2, 9")
        A("    s_add_u32 s20, s20, 0x100000")
        A("    v_lshlrev_b32 v19, 2, v0")
        A("    buffer_store_dword v17, v19, s[4:7], s20 offen")
        A("    buffer_store_dword v18, v19, s[4:7], s20 offen offset:256")
    if STAMP:
        A("    s_branch L_stamp")
    else:
        A("    s_endpgm")

    if CTL == 1:
        import struct
        def f32(x): return "0x%08x" % struct.unpack("<I", struct.pack("<f", x))[0]
        def wait_full(sneed, tag):
            A(f"L_ck{tag}:")
            A("    ds_read_b32 v6, v4")
            A("    s_waitcnt lgkmcnt(0)")
            A("    v_readfirstlane_b32 s45, v6")
            A("    s_nop 1")
            A(f"    s_cmp_ge_i32 s45, {sneed}")
            A(f"    s_cbranch_scc1 L_ck{tag}_go")
            A("    s_sub_u32 s59, s59, 1")
            A("    s_cbranch_scc1 L_done")
            A(f"    s_sleep {CSLEEP}")
            A(f"    s_branch L_ck{tag}")
            A(f"L_ck{tag}_go:")
        ROWB = NPUB * STRIDE
        PSH = {64: 2, 32: 3, 16: 4, 8: 5}[NPUB]
        A("L_ctl:")
        A("    s_waitcnt lgkmcnt(0)")
        A("    s_barrier")
        A("    s_add_u32 s4, s46, 0x200000")
        A("    s_addc_u32 s5, s47, 0")
        if STAMP == 2 and DBG:
            A("    s_mov_b32 s8, s4")
            A("    s_and_b32 s9, s5, 0xffff")
            A("    s_mov_b32 s10, 0x100000")
            A("    s_mov_b32 s11, 0x20000")
        A(f"    v_mov_b32 v4, {F_FULL}")
        A(f"    v_mov_b32 v5, {F_CTL}")
        A(f"    s_lshr_b32 s26, s2, {PSH}                     ; l")
        A(f"    s_mul_i32 s33, s26, {STRIDE}")
        A(f"    s_xor_b32 s26, s26, s2")
        A(f"    s_and_b32 s32, s26, {(1 << PSH) - 1 if PSH <= 3 else 7}")
        if PSH > 3:
            A(f"    s_bfe_u32 s26, s2, {(PSH-3) << 16 | 3}")
            A("    s_or_b32 s32, s32, s26")
        A(f"    s_mov_b32 s20, {CK0//2}")
        A("    s_mov_b32 s44, 0")
        A(f"    s_mov_b32 s24, {NCK}")
        A(f"    s_mov_b32 s27, {f32(GAIN/100.0)}")
        A(f"    s_mov_b32 s28, {f32(DMID + 0.5 + KB * DREF)}")
        if KB:
            A(f"    v_mov_b32 v20, {f32(-KB)}")
            A(f"    v_mov_b32 v21, {f32(float(DINIT))}")
        if KI:
            A(f"    v_mov_b32 v22, 0")
            A(f"    v_mov_b32 v23, {f32(KI/100.0)}")
            A(f"    v_mov_b32 v24, {f32(IMAX)}")
        A(f"    s_mov_b32 s35, {2*WIN}")
        A("L_ckl:")
        wait_full("s20", "a")
        A("    s_memrealtime s[30:31]")
        A(f"    s_add_u32 s23, s20, {LAG//2}")
        A("    s_waitcnt lgkmcnt(0)")
        if not NOST:
            A("    s_cmp_lg_u32 s32, 0")
            A("    s_cbranch_scc1 L_ck_nopub")
            A("    s_mov_b32 s34, s30")
            A("    s_atomic_swap s34, s[4:5], s33")
            A("L_ck_nopub:")
        wait_full("s23", "b")
        if not NOLD:
            for l in range(NPUB):
                A(f"    s_load_dword s{64+l}, s[4:5], {l*STRIDE}")
        A(f"    s_sub_u32 s22, {WIN}, s30")
        A("    s_mov_b32 s25, 0                            ; sum")
        A("    s_mov_b32 s26, 0                            ; count")
        A("    s_waitcnt lgkmcnt(0)")
        for l in range(NPUB):
            A(f"    s_add_u32 s{64+l}, s{64+l}, s22")
            A(f"    s_cmp_lt_u32 s{64+l}, s35")
            A(f"    s_cselect_b32 s{64+l}, s{64+l}, 0")
            A(f"    s_addc_u32 s26, s26, 0")
            A(f"    s_add_u32 s25, s25, s{64+l}")
        A(f"    s_cmp_lt_u32 s26, {MINC}")
        A("    s_cbranch_scc1 L_ck_dbg")
        A(f"    s_mul_i32 s22, s26, {WIN}")
        A("    s_sub_i32 s25, s22, s25")
        A("    v_cvt_f32_i32 v10, s25")
        A("    v_cvt_f32_u32 v13, s26")
        A("    v_rcp_f32 v13, v13")
        A("    s_nop 0")
        A("    v_mul_f32 v10, v10, v13")
        if KI:
            A("    v_fma_f32 v22, v23, v10, v22")
            A("    v_max_f32 v22, 0, v22")
            A("    v_min_f32 v22, v22, v24")
        A("    v_mul_f32 v10, s27, v10")
        A("    v_add_f32 v10, s28, v10")
        if KB:
            A("    v_fma_f32 v10, v20, v21, v10")
        if KI:
            A("    v_add_f32 v10, v10, v22")
        A("    v_cvt_i32_f32 v10, v10")
        A(f"    v_max_i32 v10, {DLO}, v10")
        A(f"    v_min_i32 v10, {DHI}, v10")
        if FIXD:
            A(f"    v_mov_b32 v10, {DINIT}")
        A("    ds_write_b32 v5, v10")
        if KB:
            A("    v_cvt_f32_i32 v21, v10")
        A("L_ck_dbg:")
        if STAMP == 2 and DBG:
            A("    s_mov_b64 exec, 1")
            A("    s_lshl_b32 s25, s2, 6")
            A("    s_add_u32 s25, s25, s44")
            A("    s_add_u32 s25, s25, 0x80000")
            A("    v_mov_b32 v14, s25")
            A("    s_lshl_b32 s26, s26, 8")
            A("    v_or_b32 v13, s26, v10")
            A("    buffer_store_dword v13, v14, s[8:11], 0 offen")
            A("    s_mov_b64 exec, -1")
        A(f"    s_add_u32 s20, s20, {CKI//2}")
        A("    s_add_u32 s44, s44, 4")
        A(f"    s_add_u32 s4, s4, {ROWB}")
        A(f"    s_addc_u32 s5, s5, 0")
        A("    s_sub_u32 s24, s24, 1")
        A("    s_cmp_lg_u32 s24, 0")
        A("    s_cbranch_scc1 L_ckl")
        A("    s_waitcnt vmcnt(0) lgkmcnt(0)")
        A("    s_endpgm")

    A("L_consumer:")
    A("    s_sub_u32 s25, s25, 1                       ; c")
    A("    s_lshl_b32 s26, s25, 15")
    A("    v_lshlrev_b32 v22, 4, v2                    ; g*16")
    A("    v_lshl_add_u32 v23, v1, 8, v22              ; j*256 + g*16 (omega)")
    A("    v_and_b32 v3, 7, v1")
    A("    v_lshl_add_u32 v22, v3, 8, v22              ; (j&7)*256 + g*16 (q)")
    A("    s_waitcnt lgkmcnt(0)")
    A("    s_barrier")
    A("    s_add_u32 s12, s32, s63")
    A("    s_addc_u32 s13, s33, 0")
    A("    s_and_b32 s13, s13, 0xffff")
    A(f"    s_mov_b32 s14, {(2048 << HP) + 2048}")
    A("    s_mov_b32 s15, 0x20000")
    A(f"    s_mov_b32 s21, {2048 << HP}")
    A("    s_mov_b32 s16, s38")
    A("    s_and_b32 s17, s39, 0xffff")
    A("    s_mov_b32 s18, 4096")
    A("    s_mov_b32 s19, 0x20000")
    for t in range(4):
        A(f"    buffer_load_dwordx4 {vr(vOm+4*t,4)}, v23, s[16:19], 0 offen offset:{64*t}")
    for t in range(4):
        A(f"    buffer_load_dwordx4 {vr(vV+4*t,4)}, v22, s[12:15], 0 offen offset:{64*t}")
    for t in range(4):
        A(f"    buffer_load_dwordx4 {vr(vV+16+4*t,4)}, v22, s[12:15], s21 offen offset:{64*t}")
    A("    v_lshlrev_b32 v22, 8, v1                    ; j*256")
    A("    v_add_u32 v22, s26, v22")
    A("    v_xor_b32 v3, v1, v2                        ; j ^ g")
    for t in range(4):
        A(f"    v_xor_b32 v23, {4*t}, v3")
        A(f"    v_lshl_add_u32 v{vKad+t}, v23, 4, v22")
    A("    v_lshrrev_b32 v3, 2, v0                     ; 4g+r")
    A("    v_lshlrev_b32 v22, 8, v3                    ; row*256")
    A("    v_add_u32 v22, s26, v22")
    A("    v_and_b32 v23, 3, v0")
    A("    v_lshl_add_u32 v22, v23, 3, v22             ; + 8c4")
    A("    v_add_u32 v22, 8192, v22")
    A("    v_and_b32 v3, 7, v3                         ; s&7")
    A("    s_lshl_b32 s44, s25, 1                      ; 2c")
    for b in range(8):
        A(f"    s_add_u32 s45, s44, {b}")
        A(f"    s_and_b32 s45, s45, 7")
        A(f"    v_xor_b32 v23, s45, v3")
        A(f"    v_lshl_add_u32 v{vVad+b}, v23, 5, v22")
    A("    v_lshlrev_b32 v3, 4, v0                     ; lane*16")
    for k in range(1, 4):
        A(f"    s_add_u32 s45, s25, {k}")
        A(f"    s_and_b32 s45, s45, 3")
        A(f"    s_mul_i32 s45, s45, 6144")
        A(f"    s_add_u32 s45, s45, {SCR + (k-1)*2048}")
        A(f"    v_add_u32 v{vX+k-1}, s45, v3")
    A(f"    s_mul_i32 s45, s25, 6144")
    A(f"    s_add_u32 s45, s45, {SCR}")
    A(f"    v_add_u32 v{vX+3}, s45, v3")
    A(f"    s_lshl_b32 s45, s25, 10")
    A(f"    s_add_u32 s45, s45, {ZSC}")
    A(f"    v_add_u32 v{vX+4}, s45, v3")
    A(f"    v_add_u32 v{vX+5}, {ZSC}, v3")
    A("    v_lshlrev_b32 v3, 2, v0")
    A("    s_lshl_b32 s45, s25, 8")
    A(f"    s_add_u32 s45, s45, {F_FREE}")
    A(f"    v_add_u32 v{vX+6}, s45, v3")
    A("    v_and_b32 v3, 3, v0")
    A("    v_lshlrev_b32 v3, 8, v3")
    A(f"    v_add_u32 v{vX+7}, {F_DONE}, v3")
    A(f"    v_mov_b32 v{vFa}, {F_FULL}")
    A("    s_mov_b32 s27, 0xffff0000")
    A("    s_mov_b32 s28, 0x3e9837f0                   ; 128^-0.25 (f32)")
    A("    s_mov_b32 s29, 0x3e9837f0")
    A("    s_mov_b32 s30, 0x3fb8aa3b                   ; log2(e)")
    A("    s_mov_b32 s31, 0x3e800000                   ; 0.25")
    A(f"    v_mov_b32 v{vHalf}, 0.5")
    for i in range(4):
        A(f"    v_mov_b32 v{vOnes+i}, 0x3f803f80")
    A(f"    v_mov_b32 v{vC1}, 0x358637bd               ; 1e-6")

    def scale_regs(base, n, dacc):
        for i in range(n):
            t = vT + 2 * (i % 4)
            A(f"    v_lshlrev_b32 v{t}, 16, v{base+i}")
            A(f"    v_and_b32 v{t+1}, s27, v{base+i}")
            A(f"    v_pk_mul_f32 {vr(t,2)}, {vr(t,2)}, s[28:29]")
            A(f"    v_cvt_pk_bf16_f32 v{base+i}, v{t}, v{t+1}")
            if i == 0:
                A(f"    v_dot2_f32_bf16 v{dacc}, v{base+i}, v{base+i}, 0")
            else:
                A(f"    v_dot2_f32_bf16 v{dacc}, v{base+i}, v{base+i}, v{dacc}")

    def feat(P, S, O):
        t = vT + 8
        A(f"    v_cvt_pk_bf16_f32 v{t}, v{P}, v{P+1}")
        A(f"    v_cvt_pk_bf16_f32 v{t+1}, v{P+2}, v{P+3}")
        A(f"    v_cvt_pk_bf16_f32 v{t+2}, v{S}, v{S+1}")
        A(f"    v_cvt_pk_bf16_f32 v{t+3}, v{S+2}, v{S+3}")
        def unpack(dst, src0, src1):
            A(f"    v_lshlrev_b32 v{dst}, 16, v{src0}")
            A(f"    v_and_b32 v{dst+1}, s27, v{src0}")
            A(f"    v_lshlrev_b32 v{dst+2}, 16, v{src1}")
            A(f"    v_and_b32 v{dst+3}, s27, v{src1}")
        unpack(P, t, t + 1)
        unpack(S, t + 2, t + 3)
        for r in range(4):
            A(f"    v_sub_f32 v{P+r}, v{P+r}, v{S+r}")
        A(f"    v_cvt_pk_bf16_f32 v{t}, v{P}, v{P+1}")
        A(f"    v_cvt_pk_bf16_f32 v{t+1}, v{P+2}, v{P+3}")
        unpack(P, t, t + 1)
        for r in range(4):
            A(f"    v_mul_f32 v{P+r}, s30, v{P+r}")
        for r in range(4):
            A(f"    v_exp_f32 v{P+r}, v{P+r}")
        A("    s_nop 0")
        A(f"    v_cvt_pk_bf16_f32 v{t}, v{P}, v{P+1}")
        A(f"    v_cvt_pk_bf16_f32 v{t+1}, v{P+2}, v{P+3}")
        unpack(P, t, t + 1)
        for r in range(4):
            A(f"    v_fma_f32 v{P+r}, v{P+r}, s31, v{vC1}")
        A(f"    v_cvt_pk_bf16_f32 v{O}, v{P}, v{P+1}")
        A(f"    v_cvt_pk_bf16_f32 v{O+1}, v{P+2}, v{P+3}")

    A("    s_waitcnt vmcnt(0)")
    for h in range(2):
        scale_regs(vV + 16 * h, 16, vD)
        A("    s_nop 2")
        for t in range(4):
            c = "0" if t == 0 else vr(vP, 4)
            A(f"    v_mfma_f32_16x16x32_bf16 {vr(vP,4)}, {vr(vOm+4*t,4)}, {vr(vV+16*h+4*t,4)}, {c}")
        A(f"    v_mfma_f32_16x16x4_f32 {vr(vS,4)}, v{vHalf}, v{vD}, 0")
        A("    s_nop 7")
        A("    s_nop 7")
        feat(vP, vS, vPq + 2 * h)

    def poll_full(sneed):
        l = lab("pf"); g = lab("pg")
        A(f"{l}:")
        A(f"    ds_read_b32 v{vFl}, v{vFa}")
        A("    s_waitcnt lgkmcnt(0)")
        A(f"    v_readfirstlane_b32 s45, v{vFl}")
        A("    s_nop 1")
        A(f"    s_cmp_ge_i32 s45, {sneed}")
        A(f"    s_cbranch_scc1 {g}")
        A("    s_sub_u32 s59, s59, 1")
        A("    s_cbranch_scc1 L_done")
        if SLEEP: A(f"    s_sleep {SLEEP}")
        A(f"    s_branch {l}")
        A(f"{g}:")

    A("    s_add_u32 s12, s40, s63")
    A("    s_addc_u32 s13, s41, 0")
    A("    s_and_b32 s13, s13, 0xffff")
    A("    s_mov_b32 s14, 2048")
    A("    s_mov_b32 s20, 1                            ; K needed: 2s+1")
    A("    s_mov_b32 s22, 0")
    A("    s_mov_b32 s23, 1                            ; epoch")
    A("L_bh:")
    for i in range(36):
        A(f"    v_mov_b32 v{vAcc+i}, 0")
    A("    s_mov_b32 s24, 16")
    A(".p2align 6")
    A("L_tile:")
    poll_full("s20")
    for u in range(2):
        for t in range(4):
            A(f"    ds_read_b128 {vr(vK+16*u+4*t,4)}, v{vKad+t} offset:{u*4096}")
    A("    s_add_u32 s21, s20, 1")
    A("    s_waitcnt lgkmcnt(0)")
    for u in range(2):
        scale_regs(vK + 16 * u, 16, vD + u)
    A("    s_nop 2")
    for u in range(2):
        for t in range(4):
            c = "0" if t == 0 else vr(vP + 4 * u, 4)
            A(f"    v_mfma_f32_16x16x32_bf16 {vr(vP+4*u,4)}, {vr(vK+16*u+4*t,4)}, {vr(vOm+4*t,4)}, {c}")
        A(f"    v_mfma_f32_16x16x4_f32 {vr(vS+4*u,4)}, v{vD+u}, v{vHalf}, 0")
    A("    s_nop 7")
    A("    s_nop 7")
    feat(vP, vS, vPhi)
    feat(vP + 4, vS + 4, vPhi + 2)
    poll_full("s21")
    for bb in range(8):
        for u in range(2):
            A(f"    ds_read_b64_tr_b16 {vr(vV+4*bb+2*u,2)}, v{vVad+bb} offset:{u*4096}")
    A("    s_add_u32 s22, s22, 1")
    A(f"    v_mov_b32 v{vFl}, s22")
    A("    s_waitcnt lgkmcnt(0)")
    A(f"    ds_write_b32 v{vX+6}, v{vFl}                ; free")
    for bb in range(8):
        A(f"    v_mfma_f32_16x16x32_bf16 {vr(vAcc+4*bb,4)}, {vr(vPhi,4)}, {vr(vV+4*bb,4)}, {vr(vAcc+4*bb,4)}")
    A(f"    v_mfma_f32_16x16x32_bf16 {vr(vZ,4)}, {vr(vPhi,4)}, {vr(vOnes,4)}, {vr(vZ,4)}")
    for t in range(4):
        A(f"    v_xor_b32 v{vKad+t}, 0x4000, v{vKad+t}")
    for b in range(8):
        A(f"    v_xor_b32 v{vVad+b}, 0x4000, v{vVad+b}")
    A("    s_add_u32 s20, s20, 2")
    A("    s_sub_u32 s24, s24, 1")
    A("    s_cmp_lg_u32 s24, 0")
    A("    s_cbranch_scc1 L_tile")

    A("    s_nop 7")
    for k in range(1, 4):
        for bb in range(2):
            A(f"    ds_write_b128 v{vX+k-1}, {vr(vAcc+8*k+4*bb,4)} offset:{bb*1024}")
    A(f"    ds_write_b128 v{vX+4}, {vr(vZ,4)}")
    A(f"    v_mov_b32 v{vFl}, s23")
    A("    s_waitcnt lgkmcnt(0)")
    A(f"    ds_write_b32 v{vX+6}, v{vFl} offset:1024")
    l = lab("pd")
    A(f"{l}:")
    A(f"    ds_read_b32 v{vFl}, v{vX+7}")
    A("    s_waitcnt lgkmcnt(0)")
    A("    s_sub_u32 s59, s59, 1")
    A("    s_cbranch_scc1 L_done")
    A(f"    v_cmp_gt_u32 vcc, s23, v{vFl}")
    A(f"    s_cbranch_vccnz {l}")
    for k in range(1, 4):
        for bb in range(2):
            A(f"    ds_read_b128 {vr(vK+8*(k-1)+4*bb,4)}, v{vX+3} offset:{(k-1)*2048+bb*1024}")
    for w in range(4):
        A(f"    ds_read_b128 {vr(vV+4*w,4)}, v{vX+5} offset:{w*1024}")
    A("    v_lshlrev_b32 v3, 8, v1                     ; j*256")
    if ST16:
        A("    v_and_b32 v22, 1, v2")
        A("    v_lshl_add_u32 v3, v22, 5, v3               ; + (g&1)*32")
        A("    v_lshrrev_b32 v22, 1, v2")
        A("    v_lshl_add_u32 v3, v22, 4, v3               ; + (g>>1)*16")
    else:
        A("    v_lshl_add_u32 v3, v2, 3, v3                ; + g*8")
    A("    s_lshl_b32 s44, s25, 6")
    A("    v_add_u32 v3, s44, v3")
    A("    s_waitcnt lgkmcnt(0)")
    for k in range(1, 4):
        for bb in range(2):
            for r in range(4):
                A(f"    v_add_f32 v{vAcc+4*bb+r}, v{vAcc+4*bb+r}, v{vK+8*(k-1)+4*bb+r}")
    for w in range(1, 4):
        for r in range(4):
            A(f"    v_add_f32 v{vV+r}, v{vV+r}, v{vV+4*w+r}")
    for bb in range(2):
        A(f"    v_cvt_pk_bf16_f32 v{vT+2*bb}, v{vAcc+4*bb}, v{vAcc+4*bb+1}")
        A(f"    v_cvt_pk_bf16_f32 v{vT+2*bb+1}, v{vAcc+4*bb+2}, v{vAcc+4*bb+3}")
    A(f"    v_cvt_pk_bf16_f32 v{vT+8}, v{vV}, v{vV+1}")
    A(f"    v_cvt_pk_bf16_f32 v{vT+9}, v{vV+2}, v{vV+3}")
    A("    s_nop 1")
    for bb in range(2):
        A(f"    v_mfma_f32_16x16x16_bf16 {vr(vAcc+4*bb,4)}, {vr(vT+2*bb,2)}, {vr(vPq,2)}, 0")
    A(f"    v_mfma_f32_16x16x16_bf16 {vr(vZ,4)}, {vr(vT+8,2)}, {vr(vPq,2)}, 0")
    A("    s_nop 7")
    A("    s_nop 1")
    A(f"    v_cvt_pk_bf16_f32 v{vT}, v{vZ}, v{vZ}")
    A(f"    v_and_b32 v{vT}, s27, v{vT}")
    A(f"    v_add_f32 v{vT}, v{vT}, v{vC1}")
    A(f"    v_cvt_pk_bf16_f32 v{vT}, v{vT}, v{vT}")
    A(f"    v_and_b32 v{vT}, s27, v{vT}               ; den")
    A(f"    v_rcp_f32 v{vT+1}, v{vT}")
    for bb in range(2):
        a = vAcc + 4 * bb
        A(f"    v_cvt_pk_bf16_f32 v{vT+2}, v{a}, v{a+1}")
        A(f"    v_cvt_pk_bf16_f32 v{vT+3}, v{a+2}, v{a+3}")
        A(f"    v_lshlrev_b32 v{a}, 16, v{vT+2}")
        A(f"    v_and_b32 v{a+1}, s27, v{vT+2}")
        A(f"    v_lshlrev_b32 v{a+2}, 16, v{vT+3}")
        A(f"    v_and_b32 v{a+3}, s27, v{vT+3}")
        for r in range(4):
            A(f"    v_mul_f32 v{vT+4+r}, v{a+r}, v{vT+1}")
        for r in range(4):
            A(f"    v_fma_f32 v{vT+8+r}, -v{vT+4+r}, v{vT}, v{a+r}")
        for r in range(4):
            A(f"    v_fma_f32 v{vT+4+r}, v{vT+8+r}, v{vT+1}, v{vT+4+r}")
        for r in range(4):
            A(f"    v_div_fixup_f32 v{vT+4+r}, v{vT+4+r}, v{vT}, v{a+r}")
        stp = (" " + STP.replace("_", " ")) if STP else ""
        if ST16:
            A(f"    v_cvt_pk_bf16_f32 v{vAcc+8+2*bb}, v{vT+4}, v{vT+5}")
            A(f"    v_cvt_pk_bf16_f32 v{vAcc+9+2*bb}, v{vT+6}, v{vT+7}")
        else:
            A(f"    v_cvt_pk_bf16_f32 v{a}, v{vT+4}, v{vT+5}")
            A(f"    v_cvt_pk_bf16_f32 v{a+1}, v{vT+6}, v{vT+7}")
            A(f"    buffer_store_dwordx2 {vr(a,2)}, v3, s[12:15], 0 offen offset:{bb*32}{stp}")
    if ST16:
        A("    s_nop 1")
        A(f"    v_permlane16_swap_b32 v{vAcc+8}, v{vAcc+10}")
        A(f"    v_permlane16_swap_b32 v{vAcc+9}, v{vAcc+11}")
        A("    s_nop 1")
        A(f"    buffer_store_dwordx4 {vr(vAcc+8,4)}, v3, s[12:15], 0 offen{stp}")
        A("    s_nop 1")
    A("    s_cmp_eq_u32 s23, 2")
    A("    s_cbranch_scc1 L_fin")
    A("    s_mov_b32 s23, 2")
    A(f"    s_add_u32 s12, s12, {2048 << HP}")
    A("    s_addc_u32 s13, s13, 0")
    A(f"    v_mov_b32 v{vPq}, v{vPq+2}")
    A(f"    v_mov_b32 v{vPq+1}, v{vPq+3}")
    A("    s_branch L_bh")
    A("L_fin:")
    if STAMP:
        A("L_stamp:")
        A("    s_waitcnt vmcnt(0)")
        A("    s_memrealtime s[50:51]")
        A("    s_getreg_b32 s52, hwreg(HW_REG_XCC_ID)")
        A("    s_getreg_b32 s53, hwreg(HW_REG_HW_ID)")
        A("    s_waitcnt lgkmcnt(0)")
        A("    s_mov_b32 s44, s46")
        A("    s_and_b32 s45, s47, 0xffff")
        A("    s_mov_b32 s46, 0x100000")
        A("    s_mov_b32 s47, 0x20000")
        for i, s in enumerate((48, 49, 50, 51, 52, 53)):
            A(f"    v_mov_b32 v{40+i}, s{s}")
        A("    v_readfirstlane_b32 s55, v200") if False else None
        A(f"    s_mul_i32 s54, s2, 5")
        A("    s_add_u32 s54, s54, s58")
        A("    s_lshl_b32 s54, s54, 5")
        A("    v_mov_b32 v46, s54")
        A("    v_cmp_eq_u32 vcc, 0, v0")
        A("    s_and_saveexec_b64 s[56:57], vcc")
        A("    buffer_store_dwordx4 v[40:43], v46, s[44:47], 0 offen")
        A("    buffer_store_dwordx2 v[44:45], v46, s[44:47], 0 offen offset:16")
        A("    s_mov_b64 exec, s[56:57]")
    A("L_done:")
    A("    s_endpgm")
    A('.section .rodata,"a"')
    A(".p2align 6")
    A(".amdhsa_kernel standalone__linear_kernel_rfa__sampling_kernel")
    A(f"  .amdhsa_next_free_vgpr {NV}")
    A("  .amdhsa_next_free_sgpr 96")
    A(f"  .amdhsa_accum_offset {NV}")
    A("  .amdhsa_group_segment_fixed_size 0")
    A("  .amdhsa_kernarg_size 56")
    A("  .amdhsa_user_sgpr_count 2")
    A("  .amdhsa_user_sgpr_kernarg_segment_ptr 1")
    A("  .amdhsa_system_sgpr_workgroup_id_x 1")
    A("  .amdhsa_float_denorm_mode_32 3")
    A(".end_amdhsa_kernel")
    L2 = [x for x in L if x is not None]
    s = "\n".join(L2) + "\n"
    if STAMP:
        s = s.replace("    s_lshr_b32 s25, s25, 6                      ; wave id\n", "    s_lshr_b32 s25, s25, 6                      ; wave id\n    s_mov_b32 s58, s25\n")
    return s

if __name__ == "__main__":
    kw = {}
    out = sys.argv[1]
    for a in sys.argv[2:]:
        k, v = a.split("=")
        try: v = int(v)
        except ValueError:
            try: v = float(v)
            except ValueError: pass
        kw[k] = v
    open(out, "w").write(gen(**kw))
```

```python
import sys

def gen(DLO=18, DHI=22, DINIT=20, POL="nt", STAMP=0, SLEEP=1, PRIO=3, MIMIC=1, CTL=1, CK0=8, CKI=8, NCK=15, STATIC=0, CSLEEP=3, RMAP=0, CMODE=6, LAG=4, GAIN=2.0, DMID=20.0, WIN=400, STPOL="sc0 sc1", LDPOL="", NOST=0, NOLD=0, DBG=1, PUB=1, FIXD=0, STRIDE=128, MINC=4, NPUB=32, ROT=0, ORD=0, PAT=1, KVI=0, PB="012", JB="", SB="", MAP="", HP=0, EARLY=0, PFV=0, KB=0.0, DREF=20.5, KI=0.0, IMAX=3.0, LATE=0, GLATE=3.0, ST16=0, STP="", DFIN=0, NFIN=1, DPRE=0, NPRE=1, FMAP="", DST=0, NST=1, XP=0, MAP12=""):
    NC = 4
    SLOTB = 16384
    RING = 8 * SLOTB
    SCR = RING
    ZSC = SCR + 24576
    FLG = ZSC + 4096
    F_FULL, F_FREE, F_DONE = FLG, FLG + 256, FLG + 256 + 1024
    F_CTL = FLG + 2304
    LDS = FLG + 2304 + 256
    assert LDS <= 163840
    NT = 128
    pol = (" " + POL.replace("_", " ")) if POL and POL != "none" else ""
    L = []; A = L.append
    vKoff, vVoff, vKad, vVad = 4, 8, 10, 14
    vOm, vK, vV, vAcc, vZ = 24, 40, 72, 104, 136
    vP, vS, vT, vPhi, vPq = 140, 148, 156, 172, 176
    vHalf, vOnes, vC1, vD = 180, 184, 188, 190
    vFl, vFa = 22, 23
    vX = 192
    NV = 200
    def vr(b, n): return f"v[{b}:{b+n-1}]"
    uid = [0]
    def lab(p):
        uid[0] += 1
        return f"L_{p}{uid[0]}"

    A(f"; @launch grid=(256,1,1) block=({384 if CTL==1 else 320},1,1) lds={LDS}")
    A('.amdgcn_target "amdgcn-amd-amdhsa--gfx950"')
    A(".text")
    A(".globl standalone__linear_kernel_rfa__sampling_kernel")
    A(".p2align 8")
    A(".type standalone__linear_kernel_rfa__sampling_kernel,@function")
    A("standalone__linear_kernel_rfa__sampling_kernel:")
    A("    s_cmp_ge_u32 s2, 256")
    A("    s_cbranch_scc1 L_done")
    A("    s_load_dwordx8 s[32:39], s[0:1], 0          ; q, k, v, omega")
    A("    s_load_dwordx4 s[40:43], s[0:1], 32")
    A("    s_load_dwordx2 s[46:47], s[0:1], 48         ; ws")
    if STAMP:
        A("    s_memrealtime s[48:49]")
    A("    v_readfirstlane_b32 s25, v0")
    A("    v_and_b32 v0, 63, v0                        ; lane")
    A("    v_and_b32 v1, 15, v0                        ; j")
    A("    v_lshrrev_b32 v2, 4, v0                     ; g")
    A("    s_lshr_b32 s25, s25, 6")
    if XP == 1:
        A("    s_and_b32 s60, s2, 0xf0")
        A("    s_and_b32 s61, s2, 7")
        A("    s_lshl_b32 s61, s61, 1")
        A("    s_or_b32 s60, s60, s61")
        A("    s_bfe_u32 s61, s2, 0x10003")
        A("    s_or_b32 s60, s60, s61")
    elif XP == 2:
        A("    s_and_b32 s60, s2, 7")
        A("    s_lshl_b32 s60, s60, 5")
        A("    s_lshr_b32 s61, s2, 3")
        A("    s_or_b32 s60, s60, s61")
    else:
        A("    s_mov_b32 s60, s2")
    A(f"    s_lshr_b32 s62, s60, {HP}")
    A(f"    s_lshl_b32 s62, s62, {HP+1}")
    A(f"    s_and_b32 s63, s60, {(1 << HP) - 1}")
    A(f"    s_or_b32 s62, s62, s63")
    A(f"    s_lshl_b32 s63, s62, 11")
    A(f"    s_lshl_b32 s62, s62, 19")
    A("    s_mov_b32 s59, 0x200000")
    if CTL == 1:
        A("    s_cmp_eq_u32 s25, 5")
        A("    s_cbranch_scc1 L_ctl")
    A("    s_cmp_lg_u32 s25, 0")
    A("    s_cbranch_scc1 L_consumer")

    if PRIO: A(f"    s_setprio {PRIO}")
    GSH = {0: 8, 1: 8, 2: 8, 3: 12, 4: 13}[PAT]
    MAP = str(MAP)
    MAP12 = str(MAP12)
    if MAP12 != "": MAP = MAP12
    if MAP != "":
        ML = [int(ch, 16) + 8 for ch in MAP.replace("m", "")]
        assert sorted(ML) == list(range(8, 20 if MAP12 else 19)), ML
        A("    v_and_b32 v22, 1, v2")
        A(f"    v_lshlrev_b32 v22, {ML[0]}, v22")
        A("    v_lshrrev_b32 v3, 1, v2")
        A(f"    v_lshl_or_b32 v22, v3, {ML[1]}, v22")
        A("    v_xor_b32 v3, v1, v2                        ; j ^ g")
    else:
        A("    v_xor_b32 v3, v1, v2                        ; j ^ g")
        A(f"    v_lshlrev_b32 v22, {GSH}, v2")
    for p in range(4):
        A(f"    v_xor_b32 v23, {4*p}, v3")
        A(f"    v_lshl_add_u32 v{vKoff+p}, v23, 4, v22")
    A("    v_lshlrev_b32 v23, 1, v2")
    A("    v_xor_b32 v3, v1, v23                       ; j ^ 2g")
    for p in range(2):
        A(f"    v_xor_b32 v23, {8*p}, v3")
        A(f"    v_lshl_add_u32 v{vVoff+p}, v23, 4, v22")
    A("    v_lshlrev_b32 v12, 2, v0                    ; lane*4")
    A(f"    v_add_u32 v12, {F_FULL}, v12")
    A("    v_mov_b32 v13, 0")
    for k in range(8):
        A(f"    ds_write_b32 v12, v13 offset:{256 + 256*k}")
    A("    v_mov_b32 v14, 0x80000000")
    A("    ds_write_b32 v12, v14")
    if STATIC == 1:
        A("    s_bfe_u32 s23, s2, 0x10003                  ; (wg>>3)&1")
        A(f"    s_mul_i32 s23, s23, {DHI-DLO}")
        A(f"    s_add_u32 s23, s23, {DLO}")
        A("    v_mov_b32 v14, s23")
    elif STATIC == 2:
        A("    s_and_b32 s23, s2, 1")
        A(f"    s_mul_i32 s23, s23, {DHI-DLO}")
        A(f"    s_add_u32 s23, s23, {DLO}")
        A("    v_mov_b32 v14, s23")
    else:
        A(f"    v_mov_b32 v14, {DINIT}")
    A(f"    ds_write_b32 v12, v14 offset:{F_CTL-F_FULL}")
    A("    v_and_b32 v15, 3, v0")
    A("    v_lshlrev_b32 v15, 8, v15")
    A(f"    v_add_u32 v15, {F_FREE}, v15")
    A(f"    v_mov_b32 v14, {F_CTL}")
    A("    v_cmp_eq_u32 vcc, 4, v0")
    A("    v_cndmask_b32 v15, v15, v14, vcc")
    A("    ds_read_b32 v16, v15")
    A("    s_waitcnt lgkmcnt(0)")
    if not EARLY:
        A("    s_barrier")
    A("    s_add_u32 s4, s34, s62")
    A("    s_addc_u32 s5, s35, 0")
    A("    s_and_b32 s5, s5, 0xffff")
    A(f"    s_mov_b32 s6, {(0x80000 << HP) + 0x80000}")
    A("    s_mov_b32 s7, 0x20000")
    A("    s_add_u32 s8, s36, s62")
    A("    s_addc_u32 s9, s37, 0")
    A("    s_and_b32 s9, s9, 0xffff")
    A(f"    s_mov_b32 s10, {(0x80000 << HP) + 0x80000}")
    A("    s_mov_b32 s11, 0x20000")
    A("    s_mov_b32 s20, 0                            ; x (tile)")
    PBL = [int(ch) for ch in str(PB).zfill(3)]
    RBL = [b for b in range(7) if b not in PBL]
    def pg(p): return sum(((p >> k) & 1) << (12 + PBL[k]) for k in range(3))
    if JB != "":
        JBL = [int(ch) + 10 for ch in str(JB).zfill(5)]
        SBL = [int(ch) + 10 for ch in str(SB).zfill(4)] if SB != "" else [b for b in range(10, 19) if b not in JBL]
        assert sorted(JBL + SBL) == list(range(10, 19))
        RBL = [b - 12 for b in SBL]
    if MAP != "":
        JBL = ML[2:7]; RBL = [b - 12 for b in ML[7:]]
    def offj(j):
        if MAP != "": return sum(((j >> k) & 1) << JBL[k] for k in range(5))
        if JB != "": return sum(((j >> k) & 1) << JBL[k] for k in range(5))
        if PAT == 1: return pg(j & 7) + (j >> 3) * 1024
        if PAT == 2: return pg(j & 7) + (((j >> 3) + (j & 7)) & 3) * 1024
        if PAT == 0: return (j >> 2) * 4096 + (j & 3) * 1024
        if PAT == 1: return (j & 7) * 4096 + (j >> 3) * 1024
        if PAT == 2: return (j & 7) * 4096 + (((j >> 3) + (j & 7)) & 3) * 1024
        if PAT == 3: return (j & 1) * 16384 + (j >> 1) * 256
        if PAT == 4: return (j & 1) * 4096 + (j >> 1) * 256
    gof = (lambda g: ((g & 1) << ML[0]) | ((g >> 1) << ML[1])) if MAP != "" else (lambda g: g << GSH)
    if MAP12:
        assert sorted(offj(j) + gof(g) + sum(((sv >> m) & 1) << (12 + RBL[m]) for m in range(5)) for j in range(32) for g in range(4) for sv in range(32)) == [256 * r for r in range(4096)]
    else:
        assert sorted(offj(j) + gof(g) + sum(((sv >> m) & 1) << (12 + RBL[m]) for m in range(4)) for j in range(32) for g in range(4) for sv in range(16)) == [256 * r for r in range(2048)]
    NS = NT // 4
    if ROT == 2:
        A("    s_lshr_b32 s19, s2, 4")
    elif ROT == 8:
        A("    s_lshr_b32 s19, s2, 3")
    else:
        A("    s_mov_b32 s19, 0")
    A("    s_and_b32 s19, s19, 15")
    def emit_off():
        if MAP12:
            A("    s_mov_b32 s21, 0")
            for m in range(5):
                A(f"    s_bfe_u32 s27, s20, {1 << 16 | m}")
                A(f"    s_lshl_b32 s27, s27, {12 + RBL[m]}")
                A(f"    s_or_b32 s21, s21, s27")
            return
        A("    s_add_u32 s21, s20, s19")
        A("    s_and_b32 s21, s21, 15")
        if RBL == [3, 4, 5, 6] and HP == 0:
            A("    s_and_b32 s27, s20, 16")
            A("    s_or_b32 s21, s21, s27")
            A("    s_lshl_b32 s21, s21, 15")
        else:
            A("    s_and_b32 s27, s20, 16")
            A(f"    s_lshl_b32 s29, s27, {15 + HP}")
            for m in range(4):
                A(f"    s_bfe_u32 s27, s21, {1 << 16 | m}")
                A(f"    s_lshl_b32 s27, s27, {12 + RBL[m]}")
                A(f"    s_or_b32 s29, s29, s27")
            A("    s_mov_b32 s21, s29")
    A("    s_mov_b32 s20, 0")
    emit_off()
    A(f"    s_mov_b32 s22, 0x80000000")
    def dma(jj, D, wait):
        if KVI == 0:
            half = jj // 32; j = jj % 32
        elif KVI == 1:
            half = jj & 1; j = jj >> 1
        elif KVI == 2:
            half = (jj >> 3) & 1; j = (jj & 7) | ((jj >> 4) << 3)
        srd = "s[4:7]" if half == 0 else "s[8:11]"
        p = j
        if MAP12 and 19 in JBL:
            kb = JBL.index(19)
            rest = [k for k in range(5) if k != kb]
            p = (((j >> kb) & 1) << 4) | sum(((j >> k) & 1) << n for n, k in enumerate(rest))
        t = p >> 3; u = (p >> 2) & 1; i = p & 3
        A(f"    s_add_u32 m0, s26, {t*32768 + half*8192 + u*4096 + i*1024}")
        A(f"    s_add_u32 s30, s21, {offj(j)}")
        if wait:
            A(f"    s_waitcnt vmcnt({D-1})")
            if KVI == 0 and jj % 32 == (D - 1) % 32:
                c = (jj - (D - 1)) // 32
                A(f"    s_add_i32 s27, s24, {c}")
                A(f"    s_max_i32 s22, s22, s27")
                A(f"    v_mov_b32 v13, s22")
                A(f"    ds_write_b32 v12, v13")
            if KVI and jj == D - 1:
                A(f"    s_max_i32 s22, s22, s24")
                A(f"    v_mov_b32 v13, s22")
                A(f"    ds_write_b32 v12, v13")
            if jj == 56:
                A("    ds_read_b32 v16, v15")
        else:
            A("    s_nop 0")
        vo = (vKoff + i) if half == 0 else (vVoff + (i & 1))
        A(f"    buffer_load_dwordx4 v{vo}, {srd}, s30 offen{pol} lds")
    if PFV:
        A("    buffer_load_dword v19, v13, s[8:11], s21 offen")
    if EARLY:
        A("    s_mov_b32 s26, 0")
        A("    s_mov_b32 s24, 0")
        for jj in range(DINIT - 1):
            dma(jj, DINIT, False)
        if STAMP == 2:
            A("    s_memrealtime s[60:61]")
            A("    s_waitcnt lgkmcnt(0)")
            A("    v_writelane_b32 v17, s60, 0")
        A("    s_barrier")
        A(f"    s_branch L_enter")
    A(".p2align 6")
    A("L_ld:")
    A("    s_and_b32 s26, s20, 1")
    A("    s_lshl_b32 s26, s26, 14")
    A("    s_add_i32 s28, s20, -1")
    if STAMP == 2:
        A("    s_memrealtime s[60:61]")
    A("L_ld_chk:")
    A("    s_waitcnt lgkmcnt(0)")
    if STAMP == 2:
        A("    s_lshl_b32 m0, s20, 2")
        A("    s_bitcmp1_b32 s20, 4")
        A("    s_cbranch_scc1 L_st_hi")
        A("    v_writelane_b32 v17, s60, m0")
        A("    s_branch L_st_dn")
        A("L_st_hi:")
        A("    v_writelane_b32 v18, s60, m0")
        A("L_st_dn:")
    A("    v_cmp_gt_i32 vcc, s28, v16")
    A("    v_readlane_b32 s31, v16, 4")
    A("    s_lshl_b32 s24, s20, 1                      ; 2s")
    A("    s_nop 1")
    A("    s_and_b32 s27, vcc_lo, 15")
    A("    s_cbranch_scc0 L_ld_go")
    A("    s_sub_u32 s59, s59, 1")
    A("    s_cbranch_scc1 L_done")
    A("    ds_read_b32 v16, v15")
    A("    s_branch L_ld_chk")
    A("L_ld_go:")
    DS = list(range(DLO, DHI + 1))
    assert DHI <= 32
    XS = []
    if DST:
        A(f"    s_cmp_lt_u32 s20, {NST}")
        A(f"    s_cbranch_scc1 L_var{DST}")
        if DST not in DS: XS.append(DST)
    if FMAP:
        FM = [int(x) for x in str(FMAP).split("-")]
        A(f"    s_cmp_lt_u32 s20, {NS - NFIN}")
        A(f"    s_cbranch_scc1 L_norm")
        for i, f in enumerate(FM):
            if i < len(FM) - 1:
                A(f"    s_cmp_le_u32 s31, {DLO + i}")
                A(f"    s_cbranch_scc1 L_var{f}")
            else:
                A(f"    s_branch L_var{f}")
            if f not in DS and f not in XS: XS.append(f)
        A("L_norm:")
    if DFIN:
        A(f"    s_cmp_ge_u32 s20, {NS - NFIN}")
        A(f"    s_cbranch_scc1 L_var{DFIN}")
        if DFIN not in DS and DFIN not in XS: XS.append(DFIN)
        if DPRE:
            A(f"    s_cmp_ge_u32 s20, {NS - NFIN - NPRE}")
            A(f"    s_cbranch_scc1 L_var{DPRE}")
            if DPRE not in DS and DPRE not in XS: XS.append(DPRE)
    for D in DS[:-1]:
        A(f"    s_cmp_le_u32 s31, {D}")
        A(f"    s_cbranch_scc1 L_var{D}")
    for D in XS + list(reversed(DS)):
        A(f"L_var{D}:")
        for jj in range(64):
            if EARLY and D == DINIT and jj == DINIT - 1:
                A("L_enter:")
            dma(jj, D, True)
        A("    s_add_u32 s20, s20, 1")
        emit_off()
        A(f"    s_cmp_lt_u32 s20, {NS}")
        A("    s_cbranch_scc1 L_ld")
        if D != DS[0]:
            A("    s_branch L_drain")
    A("L_drain:")
    for val in ((2 * NS - 1, 2 * NS) if KVI == 0 else (2 * NS,)):
        A(f"    s_waitcnt vmcnt({NS*64 - 32*val})")
        A(f"    s_max_i32 s22, s22, {val}")
        A(f"    v_mov_b32 v13, s22")
        A(f"    ds_write_b32 v12, v13")
    A("    s_waitcnt lgkmcnt(0)")
    if STAMP == 2:
        A("    s_mov_b32 s4, s46")
        A("    s_and_b32 s5, s47, 0xffff")
        A("    s_mov_b32 s6, 0x1000000")
        A("    s_mov_b32 s7, 0x20000")
        A("    s_lshl_b32 s20, s2, 9")
        A("    s_add_u32 s20, s20, 0x100000")
        A("    v_lshlrev_b32 v19, 2, v0")
        A("    buffer_store_dword v17, v19, s[4:7], s20 offen")
        A("    buffer_store_dword v18, v19, s[4:7], s20 offen offset:256")
    if STAMP:
        A("    s_branch L_stamp")
    else:
        A("    s_endpgm")

    if CTL == 1:
        import struct
        def f32(x): return "0x%08x" % struct.unpack("<I", struct.pack("<f", x))[0]
        def wait_full(sneed, tag):
            A(f"L_ck{tag}:")
            A("    ds_read_b32 v6, v4")
            A("    s_waitcnt lgkmcnt(0)")
            A("    v_readfirstlane_b32 s45, v6")
            A("    s_nop 1")
            A(f"    s_cmp_ge_i32 s45, {sneed}")
            A(f"    s_cbranch_scc1 L_ck{tag}_go")
            A("    s_sub_u32 s59, s59, 1")
            A("    s_cbranch_scc1 L_done")
            A(f"    s_sleep {CSLEEP}")
            A(f"    s_branch L_ck{tag}")
            A(f"L_ck{tag}_go:")
        ROWB = NPUB * STRIDE
        PSH = {64: 2, 32: 3, 16: 4, 8: 5}[NPUB]
        A("L_ctl:")
        A("    s_waitcnt lgkmcnt(0)")
        A("    s_barrier")
        A("    s_add_u32 s4, s46, 0x200000")
        A("    s_addc_u32 s5, s47, 0")
        if STAMP == 2 and DBG:
            A("    s_mov_b32 s8, s4")
            A("    s_and_b32 s9, s5, 0xffff")
            A("    s_mov_b32 s10, 0x100000")
            A("    s_mov_b32 s11, 0x20000")
        A(f"    v_mov_b32 v4, {F_FULL}")
        A(f"    v_mov_b32 v5, {F_CTL}")
        A(f"    s_lshr_b32 s26, s2, {PSH}                     ; l")
        A(f"    s_mul_i32 s33, s26, {STRIDE}")
        A(f"    s_xor_b32 s26, s26, s2")
        A(f"    s_and_b32 s32, s26, {(1 << PSH) - 1 if PSH <= 3 else 7}")
        if PSH > 3:
            A(f"    s_bfe_u32 s26, s2, {(PSH-3) << 16 | 3}")
            A("    s_or_b32 s32, s32, s26")
        A(f"    s_mov_b32 s20, {CK0//2}")
        A("    s_mov_b32 s44, 0")
        A(f"    s_mov_b32 s24, {NCK}")
        A(f"    s_mov_b32 s27, {f32(GAIN/100.0)}")
        A(f"    s_mov_b32 s28, {f32(DMID + 0.5 + KB * DREF)}")
        if KB:
            A(f"    v_mov_b32 v20, {f32(-KB)}")
            A(f"    v_mov_b32 v21, {f32(float(DINIT))}")
        if KI:
            A(f"    v_mov_b32 v22, 0")
            A(f"    v_mov_b32 v23, {f32(KI/100.0)}")
            A(f"    v_mov_b32 v24, {f32(IMAX)}")
        A(f"    s_mov_b32 s35, {2*WIN}")
        A("L_ckl:")
        wait_full("s20", "a")
        A("    s_memrealtime s[30:31]")
        A(f"    s_add_u32 s23, s20, {LAG//2}")
        A("    s_waitcnt lgkmcnt(0)")
        if not NOST:
            A("    s_cmp_lg_u32 s32, 0")
            A("    s_cbranch_scc1 L_ck_nopub")
            A("    s_mov_b32 s34, s30")
            A("    s_atomic_swap s34, s[4:5], s33")
            A("L_ck_nopub:")
        wait_full("s23", "b")
        if not NOLD:
            for l in range(NPUB):
                A(f"    s_load_dword s{64+l}, s[4:5], {l*STRIDE}")
        A(f"    s_sub_u32 s22, {WIN}, s30")
        A("    s_mov_b32 s25, 0                            ; sum")
        A("    s_mov_b32 s26, 0                            ; count")
        A("    s_waitcnt lgkmcnt(0)")
        for l in range(NPUB):
            A(f"    s_add_u32 s{64+l}, s{64+l}, s22")
            A(f"    s_cmp_lt_u32 s{64+l}, s35")
            A(f"    s_cselect_b32 s{64+l}, s{64+l}, 0")
            A(f"    s_addc_u32 s26, s26, 0")
            A(f"    s_add_u32 s25, s25, s{64+l}")
        A(f"    s_cmp_lt_u32 s26, {MINC}")
        A("    s_cbranch_scc1 L_ck_dbg")
        A(f"    s_mul_i32 s22, s26, {WIN}")
        A("    s_sub_i32 s25, s22, s25")
        A("    v_cvt_f32_i32 v10, s25")
        A("    v_cvt_f32_u32 v13, s26")
        A("    v_rcp_f32 v13, v13")
        A("    s_nop 0")
        A("    v_mul_f32 v10, v10, v13")
        if KI:
            A("    v_fma_f32 v22, v23, v10, v22")
            A("    v_max_f32 v22, 0, v22")
            A("    v_min_f32 v22, v22, v24")
        A("    v_mul_f32 v10, s27, v10")
        A("    v_add_f32 v10, s28, v10")
        if KB:
            A("    v_fma_f32 v10, v20, v21, v10")
        if KI:
            A("    v_add_f32 v10, v10, v22")
        A("    v_cvt_i32_f32 v10, v10")
        A(f"    v_max_i32 v10, {DLO}, v10")
        A(f"    v_min_i32 v10, {DHI}, v10")
        if FIXD:
            A(f"    v_mov_b32 v10, {DINIT}")
        A("    ds_write_b32 v5, v10")
        if KB:
            A("    v_cvt_f32_i32 v21, v10")
        A("L_ck_dbg:")
        if STAMP == 2 and DBG:
            A("    s_mov_b64 exec, 1")
            A("    s_lshl_b32 s25, s2, 6")
            A("    s_add_u32 s25, s25, s44")
            A("    s_add_u32 s25, s25, 0x80000")
            A("    v_mov_b32 v14, s25")
            A("    s_lshl_b32 s26, s26, 8")
            A("    v_or_b32 v13, s26, v10")
            A("    buffer_store_dword v13, v14, s[8:11], 0 offen")
            A("    s_mov_b64 exec, -1")
        A(f"    s_add_u32 s20, s20, {CKI//2}")
        A("    s_add_u32 s44, s44, 4")
        A(f"    s_add_u32 s4, s4, {ROWB}")
        A(f"    s_addc_u32 s5, s5, 0")
        A("    s_sub_u32 s24, s24, 1")
        A("    s_cmp_lg_u32 s24, 0")
        A("    s_cbranch_scc1 L_ckl")
        A("    s_waitcnt vmcnt(0) lgkmcnt(0)")
        A("    s_endpgm")

    A("L_consumer:")
    A("    s_sub_u32 s25, s25, 1                       ; c")
    A("    s_lshl_b32 s26, s25, 15")
    A("    v_lshlrev_b32 v22, 4, v2                    ; g*16")
    A("    v_lshl_add_u32 v23, v1, 8, v22              ; j*256 + g*16 (omega)")
    A("    v_and_b32 v3, 7, v1")
    A("    v_lshl_add_u32 v22, v3, 8, v22              ; (j&7)*256 + g*16 (q)")
    A("    s_waitcnt lgkmcnt(0)")
    A("    s_barrier")
    A("    s_add_u32 s12, s32, s63")
    A("    s_addc_u32 s13, s33, 0")
    A("    s_and_b32 s13, s13, 0xffff")
    A(f"    s_mov_b32 s14, {(2048 << HP) + 2048}")
    A("    s_mov_b32 s15, 0x20000")
    A(f"    s_mov_b32 s21, {2048 << HP}")
    A("    s_mov_b32 s16, s38")
    A("    s_and_b32 s17, s39, 0xffff")
    A("    s_mov_b32 s18, 4096")
    A("    s_mov_b32 s19, 0x20000")
    for t in range(4):
        A(f"    buffer_load_dwordx4 {vr(vOm+4*t,4)}, v23, s[16:19], 0 offen offset:{64*t}")
    for t in range(4):
        A(f"    buffer_load_dwordx4 {vr(vV+4*t,4)}, v22, s[12:15], 0 offen offset:{64*t}")
    for t in range(4):
        A(f"    buffer_load_dwordx4 {vr(vV+16+4*t,4)}, v22, s[12:15], s21 offen offset:{64*t}")
    A("    v_lshlrev_b32 v22, 8, v1                    ; j*256")
    A("    v_add_u32 v22, s26, v22")
    A("    v_xor_b32 v3, v1, v2                        ; j ^ g")
    for t in range(4):
        A(f"    v_xor_b32 v23, {4*t}, v3")
        A(f"    v_lshl_add_u32 v{vKad+t}, v23, 4, v22")
    A("    v_lshrrev_b32 v3, 2, v0                     ; 4g+r")
    A("    v_lshlrev_b32 v22, 8, v3                    ; row*256")
    A("    v_add_u32 v22, s26, v22")
    A("    v_and_b32 v23, 3, v0")
    A("    v_lshl_add_u32 v22, v23, 3, v22             ; + 8c4")
    A("    v_add_u32 v22, 8192, v22")
    A("    v_and_b32 v3, 7, v3                         ; s&7")
    A("    s_lshl_b32 s44, s25, 1                      ; 2c")
    for b in range(8):
        A(f"    s_add_u32 s45, s44, {b}")
        A(f"    s_and_b32 s45, s45, 7")
        A(f"    v_xor_b32 v23, s45, v3")
        A(f"    v_lshl_add_u32 v{vVad+b}, v23, 5, v22")
    A("    v_lshlrev_b32 v3, 4, v0                     ; lane*16")
    for k in range(1, 4):
        A(f"    s_add_u32 s45, s25, {k}")
        A(f"    s_and_b32 s45, s45, 3")
        A(f"    s_mul_i32 s45, s45, 6144")
        A(f"    s_add_u32 s45, s45, {SCR + (k-1)*2048}")
        A(f"    v_add_u32 v{vX+k-1}, s45, v3")
    A(f"    s_mul_i32 s45, s25, 6144")
    A(f"    s_add_u32 s45, s45, {SCR}")
    A(f"    v_add_u32 v{vX+3}, s45, v3")
    A(f"    s_lshl_b32 s45, s25, 10")
    A(f"    s_add_u32 s45, s45, {ZSC}")
    A(f"    v_add_u32 v{vX+4}, s45, v3")
    A(f"    v_add_u32 v{vX+5}, {ZSC}, v3")
    A("    v_lshlrev_b32 v3, 2, v0")
    A("    s_lshl_b32 s45, s25, 8")
    A(f"    s_add_u32 s45, s45, {F_FREE}")
    A(f"    v_add_u32 v{vX+6}, s45, v3")
    A("    v_and_b32 v3, 3, v0")
    A("    v_lshlrev_b32 v3, 8, v3")
    A(f"    v_add_u32 v{vX+7}, {F_DONE}, v3")
    A(f"    v_mov_b32 v{vFa}, {F_FULL}")
    A("    s_mov_b32 s27, 0xffff0000")
    A("    s_mov_b32 s28, 0x3e9837f0                   ; 128^-0.25 (f32)")
    A("    s_mov_b32 s29, 0x3e9837f0")
    A("    s_mov_b32 s30, 0x3fb8aa3b                   ; log2(e)")
    A("    s_mov_b32 s31, 0x3e800000                   ; 0.25")
    A(f"    v_mov_b32 v{vHalf}, 0.5")
    for i in range(4):
        A(f"    v_mov_b32 v{vOnes+i}, 0x3f803f80")
    A(f"    v_mov_b32 v{vC1}, 0x358637bd               ; 1e-6")

    def scale_regs(base, n, dacc):
        for i in range(n):
            t = vT + 2 * (i % 4)
            A(f"    v_lshlrev_b32 v{t}, 16, v{base+i}")
            A(f"    v_and_b32 v{t+1}, s27, v{base+i}")
            A(f"    v_pk_mul_f32 {vr(t,2)}, {vr(t,2)}, s[28:29]")
            A(f"    v_cvt_pk_bf16_f32 v{base+i}, v{t}, v{t+1}")
            if i == 0:
                A(f"    v_dot2_f32_bf16 v{dacc}, v{base+i}, v{base+i}, 0")
            else:
                A(f"    v_dot2_f32_bf16 v{dacc}, v{base+i}, v{base+i}, v{dacc}")

    def feat(P, S, O):
        t = vT + 8
        A(f"    v_cvt_pk_bf16_f32 v{t}, v{P}, v{P+1}")
        A(f"    v_cvt_pk_bf16_f32 v{t+1}, v{P+2}, v{P+3}")
        A(f"    v_cvt_pk_bf16_f32 v{t+2}, v{S}, v{S+1}")
        A(f"    v_cvt_pk_bf16_f32 v{t+3}, v{S+2}, v{S+3}")
        def unpack(dst, src0, src1):
            A(f"    v_lshlrev_b32 v{dst}, 16, v{src0}")
            A(f"    v_and_b32 v{dst+1}, s27, v{src0}")
            A(f"    v_lshlrev_b32 v{dst+2}, 16, v{src1}")
            A(f"    v_and_b32 v{dst+3}, s27, v{src1}")
        unpack(P, t, t + 1)
        unpack(S, t + 2, t + 3)
        for r in range(4):
            A(f"    v_sub_f32 v{P+r}, v{P+r}, v{S+r}")
        A(f"    v_cvt_pk_bf16_f32 v{t}, v{P}, v{P+1}")
        A(f"    v_cvt_pk_bf16_f32 v{t+1}, v{P+2}, v{P+3}")
        unpack(P, t, t + 1)
        for r in range(4):
            A(f"    v_mul_f32 v{P+r}, s30, v{P+r}")
        for r in range(4):
            A(f"    v_exp_f32 v{P+r}, v{P+r}")
        A("    s_nop 0")
        A(f"    v_cvt_pk_bf16_f32 v{t}, v{P}, v{P+1}")
        A(f"    v_cvt_pk_bf16_f32 v{t+1}, v{P+2}, v{P+3}")
        unpack(P, t, t + 1)
        for r in range(4):
            A(f"    v_fma_f32 v{P+r}, v{P+r}, s31, v{vC1}")
        A(f"    v_cvt_pk_bf16_f32 v{O}, v{P}, v{P+1}")
        A(f"    v_cvt_pk_bf16_f32 v{O+1}, v{P+2}, v{P+3}")

    A("    s_waitcnt vmcnt(0)")
    for h in range(2):
        scale_regs(vV + 16 * h, 16, vD)
        A("    s_nop 2")
        for t in range(4):
            c = "0" if t == 0 else vr(vP, 4)
            A(f"    v_mfma_f32_16x16x32_bf16 {vr(vP,4)}, {vr(vOm+4*t,4)}, {vr(vV+16*h+4*t,4)}, {c}")
        A(f"    v_mfma_f32_16x16x4_f32 {vr(vS,4)}, v{vHalf}, v{vD}, 0")
        A("    s_nop 7")
        A("    s_nop 7")
        feat(vP, vS, vPq + 2 * h)

    def poll_full(sneed):
        l = lab("pf"); g = lab("pg")
        A(f"{l}:")
        A(f"    ds_read_b32 v{vFl}, v{vFa}")
        A("    s_waitcnt lgkmcnt(0)")
        A(f"    v_readfirstlane_b32 s45, v{vFl}")
        A("    s_nop 1")
        A(f"    s_cmp_ge_i32 s45, {sneed}")
        A(f"    s_cbranch_scc1 {g}")
        A("    s_sub_u32 s59, s59, 1")
        A("    s_cbranch_scc1 L_done")
        if SLEEP: A(f"    s_sleep {SLEEP}")
        A(f"    s_branch {l}")
        A(f"{g}:")

    A("    s_add_u32 s12, s40, s63")
    A("    s_addc_u32 s13, s41, 0")
    A("    s_and_b32 s13, s13, 0xffff")
    A("    s_mov_b32 s14, 2048")
    A("    s_mov_b32 s20, 1                            ; K needed: 2s+1")
    A("    s_mov_b32 s22, 0")
    A("    s_mov_b32 s23, 1                            ; epoch")
    A("L_bh:")
    for i in range(36):
        A(f"    v_mov_b32 v{vAcc+i}, 0")
    A("    s_mov_b32 s24, 16")
    A(".p2align 6")
    A("L_tile:")
    poll_full("s20")
    for u in range(2):
        for t in range(4):
            A(f"    ds_read_b128 {vr(vK+16*u+4*t,4)}, v{vKad+t} offset:{u*4096}")
    A("    s_add_u32 s21, s20, 1")
    A("    s_waitcnt lgkmcnt(0)")
    for u in range(2):
        scale_regs(vK + 16 * u, 16, vD + u)
    A("    s_nop 2")
    for u in range(2):
        for t in range(4):
            c = "0" if t == 0 else vr(vP + 4 * u, 4)
            A(f"    v_mfma_f32_16x16x32_bf16 {vr(vP+4*u,4)}, {vr(vK+16*u+4*t,4)}, {vr(vOm+4*t,4)}, {c}")
        A(f"    v_mfma_f32_16x16x4_f32 {vr(vS+4*u,4)}, v{vD+u}, v{vHalf}, 0")
    A("    s_nop 7")
    A("    s_nop 7")
    feat(vP, vS, vPhi)
    feat(vP + 4, vS + 4, vPhi + 2)
    poll_full("s21")
    for bb in range(8):
        for u in range(2):
            A(f"    ds_read_b64_tr_b16 {vr(vV+4*bb+2*u,2)}, v{vVad+bb} offset:{u*4096}")
    A("    s_add_u32 s22, s22, 1")
    A(f"    v_mov_b32 v{vFl}, s22")
    A("    s_waitcnt lgkmcnt(0)")
    A(f"    ds_write_b32 v{vX+6}, v{vFl}                ; free")
    for bb in range(8):
        A(f"    v_mfma_f32_16x16x32_bf16 {vr(vAcc+4*bb,4)}, {vr(vPhi,4)}, {vr(vV+4*bb,4)}, {vr(vAcc+4*bb,4)}")
    A(f"    v_mfma_f32_16x16x32_bf16 {vr(vZ,4)}, {vr(vPhi,4)}, {vr(vOnes,4)}, {vr(vZ,4)}")
    for t in range(4):
        A(f"    v_xor_b32 v{vKad+t}, 0x4000, v{vKad+t}")
    for b in range(8):
        A(f"    v_xor_b32 v{vVad+b}, 0x4000, v{vVad+b}")
    A("    s_add_u32 s20, s20, 2")
    A("    s_sub_u32 s24, s24, 1")
    A("    s_cmp_lg_u32 s24, 0")
    A("    s_cbranch_scc1 L_tile")

    A("    s_nop 7")
    for k in range(1, 4):
        for bb in range(2):
            A(f"    ds_write_b128 v{vX+k-1}, {vr(vAcc+8*k+4*bb,4)} offset:{bb*1024}")
    A(f"    ds_write_b128 v{vX+4}, {vr(vZ,4)}")
    A(f"    v_mov_b32 v{vFl}, s23")
    A("    s_waitcnt lgkmcnt(0)")
    A(f"    ds_write_b32 v{vX+6}, v{vFl} offset:1024")
    l = lab("pd")
    A(f"{l}:")
    A(f"    ds_read_b32 v{vFl}, v{vX+7}")
    A("    s_waitcnt lgkmcnt(0)")
    A("    s_sub_u32 s59, s59, 1")
    A("    s_cbranch_scc1 L_done")
    A(f"    v_cmp_gt_u32 vcc, s23, v{vFl}")
    A(f"    s_cbranch_vccnz {l}")
    for k in range(1, 4):
        for bb in range(2):
            A(f"    ds_read_b128 {vr(vK+8*(k-1)+4*bb,4)}, v{vX+3} offset:{(k-1)*2048+bb*1024}")
    for w in range(4):
        A(f"    ds_read_b128 {vr(vV+4*w,4)}, v{vX+5} offset:{w*1024}")
    A("    v_lshlrev_b32 v3, 8, v1                     ; j*256")
    if ST16:
        A("    v_and_b32 v22, 1, v2")
        A("    v_lshl_add_u32 v3, v22, 5, v3               ; + (g&1)*32")
        A("    v_lshrrev_b32 v22, 1, v2")
        A("    v_lshl_add_u32 v3, v22, 4, v3               ; + (g>>1)*16")
    else:
        A("    v_lshl_add_u32 v3, v2, 3, v3                ; + g*8")
    A("    s_lshl_b32 s44, s25, 6")
    A("    v_add_u32 v3, s44, v3")
    A("    s_waitcnt lgkmcnt(0)")
    for k in range(1, 4):
        for bb in range(2):
            for r in range(4):
                A(f"    v_add_f32 v{vAcc+4*bb+r}, v{vAcc+4*bb+r}, v{vK+8*(k-1)+4*bb+r}")
    for w in range(1, 4):
        for r in range(4):
            A(f"    v_add_f32 v{vV+r}, v{vV+r}, v{vV+4*w+r}")
    for bb in range(2):
        A(f"    v_cvt_pk_bf16_f32 v{vT+2*bb}, v{vAcc+4*bb}, v{vAcc+4*bb+1}")
        A(f"    v_cvt_pk_bf16_f32 v{vT+2*bb+1}, v{vAcc+4*bb+2}, v{vAcc+4*bb+3}")
    A(f"    v_cvt_pk_bf16_f32 v{vT+8}, v{vV}, v{vV+1}")
    A(f"    v_cvt_pk_bf16_f32 v{vT+9}, v{vV+2}, v{vV+3}")
    A("    s_nop 1")
    for bb in range(2):
        A(f"    v_mfma_f32_16x16x16_bf16 {vr(vAcc+4*bb,4)}, {vr(vT+2*bb,2)}, {vr(vPq,2)}, 0")
    A(f"    v_mfma_f32_16x16x16_bf16 {vr(vZ,4)}, {vr(vT+8,2)}, {vr(vPq,2)}, 0")
    A("    s_nop 7")
    A("    s_nop 1")
    A(f"    v_cvt_pk_bf16_f32 v{vT}, v{vZ}, v{vZ}")
    A(f"    v_and_b32 v{vT}, s27, v{vT}")
    A(f"    v_add_f32 v{vT}, v{vT}, v{vC1}")
    A(f"    v_cvt_pk_bf16_f32 v{vT}, v{vT}, v{vT}")
    A(f"    v_and_b32 v{vT}, s27, v{vT}               ; den")
    A(f"    v_rcp_f32 v{vT+1}, v{vT}")
    for bb in range(2):
        a = vAcc + 4 * bb
        A(f"    v_cvt_pk_bf16_f32 v{vT+2}, v{a}, v{a+1}")
        A(f"    v_cvt_pk_bf16_f32 v{vT+3}, v{a+2}, v{a+3}")
        A(f"    v_lshlrev_b32 v{a}, 16, v{vT+2}")
        A(f"    v_and_b32 v{a+1}, s27, v{vT+2}")
        A(f"    v_lshlrev_b32 v{a+2}, 16, v{vT+3}")
        A(f"    v_and_b32 v{a+3}, s27, v{vT+3}")
        for r in range(4):
            A(f"    v_mul_f32 v{vT+4+r}, v{a+r}, v{vT+1}")
        for r in range(4):
            A(f"    v_fma_f32 v{vT+8+r}, -v{vT+4+r}, v{vT}, v{a+r}")
        for r in range(4):
            A(f"    v_fma_f32 v{vT+4+r}, v{vT+8+r}, v{vT+1}, v{vT+4+r}")
        for r in range(4):
            A(f"    v_div_fixup_f32 v{vT+4+r}, v{vT+4+r}, v{vT}, v{a+r}")
        stp = (" " + STP.replace("_", " ")) if STP else ""
        if ST16:
            A(f"    v_cvt_pk_bf16_f32 v{vAcc+8+2*bb}, v{vT+4}, v{vT+5}")
            A(f"    v_cvt_pk_bf16_f32 v{vAcc+9+2*bb}, v{vT+6}, v{vT+7}")
        else:
            A(f"    v_cvt_pk_bf16_f32 v{a}, v{vT+4}, v{vT+5}")
            A(f"    v_cvt_pk_bf16_f32 v{a+1}, v{vT+6}, v{vT+7}")
            A(f"    buffer_store_dwordx2 {vr(a,2)}, v3, s[12:15], 0 offen offset:{bb*32}{stp}")
    if ST16:
        A("    s_nop 1")
        A(f"    v_permlane16_swap_b32 v{vAcc+8}, v{vAcc+10}")
        A(f"    v_permlane16_swap_b32 v{vAcc+9}, v{vAcc+11}")
        A("    s_nop 1")
        A(f"    buffer_store_dwordx4 {vr(vAcc+8,4)}, v3, s[12:15], 0 offen{stp}")
        A("    s_nop 1")
    A("    s_cmp_eq_u32 s23, 2")
    A("    s_cbranch_scc1 L_fin")
    A("    s_mov_b32 s23, 2")
    A(f"    s_add_u32 s12, s12, {2048 << HP}")
    A("    s_addc_u32 s13, s13, 0")
    A(f"    v_mov_b32 v{vPq}, v{vPq+2}")
    A(f"    v_mov_b32 v{vPq+1}, v{vPq+3}")
    A("    s_branch L_bh")
    A("L_fin:")
    if STAMP:
        A("L_stamp:")
        A("    s_waitcnt vmcnt(0)")
        A("    s_memrealtime s[50:51]")
        A("    s_getreg_b32 s52, hwreg(HW_REG_XCC_ID)")
        A("    s_getreg_b32 s53, hwreg(HW_REG_HW_ID)")
        A("    s_waitcnt lgkmcnt(0)")
        A("    s_mov_b32 s44, s46")
        A("    s_and_b32 s45, s47, 0xffff")
        A("    s_mov_b32 s46, 0x100000")
        A("    s_mov_b32 s47, 0x20000")
        for i, s in enumerate((48, 49, 50, 51, 52, 53)):
            A(f"    v_mov_b32 v{40+i}, s{s}")
        A("    v_readfirstlane_b32 s55, v200") if False else None
        A(f"    s_mul_i32 s54, s2, 5")
        A("    s_add_u32 s54, s54, s58")
        A("    s_lshl_b32 s54, s54, 5")
        A("    v_mov_b32 v46, s54")
        A("    v_cmp_eq_u32 vcc, 0, v0")
        A("    s_and_saveexec_b64 s[56:57], vcc")
        A("    buffer_store_dwordx4 v[40:43], v46, s[44:47], 0 offen")
        A("    buffer_store_dwordx2 v[44:45], v46, s[44:47], 0 offen offset:16")
        A("    s_mov_b64 exec, s[56:57]")
    A("L_done:")
    A("    s_endpgm")
    A('.section .rodata,"a"')
    A(".p2align 6")
    A(".amdhsa_kernel standalone__linear_kernel_rfa__sampling_kernel")
    A(f"  .amdhsa_next_free_vgpr {NV}")
    A("  .amdhsa_next_free_sgpr 96")
    A(f"  .amdhsa_accum_offset {NV}")
    A("  .amdhsa_group_segment_fixed_size 0")
    A("  .amdhsa_kernarg_size 56")
    A("  .amdhsa_user_sgpr_count 2")
    A("  .amdhsa_user_sgpr_kernarg_segment_ptr 1")
    A("  .amdhsa_system_sgpr_workgroup_id_x 1")
    A("  .amdhsa_float_denorm_mode_32 3")
    A(".end_amdhsa_kernel")
    L2 = [x for x in L if x is not None]
    s = "\n".join(L2) + "\n"
    if STAMP:
        s = s.replace("    s_lshr_b32 s25, s25, 6                      ; wave id\n", "    s_lshr_b32 s25, s25, 6                      ; wave id\n    s_mov_b32 s58, s25\n")
    return s

if __name__ == "__main__":
    kw = {}
    out = sys.argv[1]
    for a in sys.argv[2:]:
        k, v = a.split("=")
        try: v = int(v)
        except ValueError:
            try: v = float(v)
            except ValueError: pass
        kw[k] = v
    open(out, "w").write(gen(**kw))
```

```python
import sys

def gen(DLO=18, DHI=22, DINIT=20, POL="nt", STAMP=0, SLEEP=1, PRIO=3, MIMIC=1, CTL=1, CK0=8, CKI=8, NCK=15, STATIC=0, CSLEEP=3, RMAP=0, CMODE=6, LAG=4, GAIN=2.0, DMID=20.0, WIN=400, STPOL="sc0 sc1", LDPOL="", NOST=0, NOLD=0, DBG=1, PUB=1, FIXD=0, STRIDE=128, MINC=4, NPUB=32, ROT=0, ORD=0, PAT=1, KVI=0, PB="012", JB="", SB="", MAP="", HP=0, EARLY=0, PFV=0, KB=0.0, DREF=20.5, KI=0.0, IMAX=3.0, LATE=0, GLATE=3.0, ST16=0, STP="", DFIN=0, NFIN=1, DPRE=0, NPRE=1, FMAP="", DST=0, NST=1, XP=0, MAP12="", DIAG=0, NOPRO=0, QNT=0, QSH=0, QLATE=1):
    NC = 4
    SLOTB = 16384
    RING = 8 * SLOTB
    SCR = RING
    ZSC = SCR + 24576
    FLG = ZSC + 4096
    F_FULL, F_FREE, F_DONE = FLG, FLG + 256, FLG + 256 + 1024
    F_CTL = FLG + 2304
    F_PQ = FLG + 2304 + 256
    LDS = FLG + 2304 + 256 + (1024 if QSH else 0)
    assert LDS <= 163840
    NT = 128
    pol = (" " + POL.replace("_", " ")) if POL and POL != "none" else ""
    L = []; A = L.append
    vKoff, vVoff, vKad, vVad = 4, 8, 10, 14
    vOm, vK, vV, vAcc, vZ = 24, 40, 72, 104, 136
    vP, vS, vT, vPhi, vPq = 140, 148, 156, 172, 176
    vHalf, vOnes, vC1, vD = 180, 184, 188, 190
    vFl, vFa = 22, 23
    vX = 192
    NV = 200
    def vr(b, n): return f"v[{b}:{b+n-1}]"
    uid = [0]
    def lab(p):
        uid[0] += 1
        return f"L_{p}{uid[0]}"

    A(f"; @launch grid=(256,1,1) block=({384 if CTL==1 else 320},1,1) lds={LDS}")
    A('.amdgcn_target "amdgcn-amd-amdhsa--gfx950"')
    A(".text")
    A(".globl standalone__linear_kernel_rfa__sampling_kernel")
    A(".p2align 8")
    A(".type standalone__linear_kernel_rfa__sampling_kernel,@function")
    A("standalone__linear_kernel_rfa__sampling_kernel:")
    A("    s_cmp_ge_u32 s2, 256")
    A("    s_cbranch_scc1 L_done")
    A("    s_load_dwordx8 s[32:39], s[0:1], 0          ; q, k, v, omega")
    A("    s_load_dwordx4 s[40:43], s[0:1], 32")
    A("    s_load_dwordx2 s[46:47], s[0:1], 48         ; ws")
    if STAMP:
        A("    s_memrealtime s[48:49]")
    A("    v_readfirstlane_b32 s25, v0")
    A("    v_and_b32 v0, 63, v0                        ; lane")
    A("    v_and_b32 v1, 15, v0                        ; j")
    A("    v_lshrrev_b32 v2, 4, v0                     ; g")
    A("    s_lshr_b32 s25, s25, 6")
    if XP == 1:
        A("    s_and_b32 s60, s2, 0xf0")
        A("    s_and_b32 s61, s2, 7")
        A("    s_lshl_b32 s61, s61, 1")
        A("    s_or_b32 s60, s60, s61")
        A("    s_bfe_u32 s61, s2, 0x10003")
        A("    s_or_b32 s60, s60, s61")
    elif XP == 2:
        A("    s_and_b32 s60, s2, 7")
        A("    s_lshl_b32 s60, s60, 5")
        A("    s_lshr_b32 s61, s2, 3")
        A("    s_or_b32 s60, s60, s61")
    else:
        A("    s_mov_b32 s60, s2")
    A(f"    s_lshr_b32 s62, s60, {HP}")
    A(f"    s_lshl_b32 s62, s62, {HP+1}")
    A(f"    s_and_b32 s63, s60, {(1 << HP) - 1}")
    A(f"    s_or_b32 s62, s62, s63")
    A(f"    s_lshl_b32 s63, s62, 11")
    A(f"    s_lshl_b32 s62, s62, 19")
    A("    s_mov_b32 s59, 0x200000")
    if CTL == 1:
        A("    s_cmp_eq_u32 s25, 5")
        A("    s_cbranch_scc1 L_ctl")
    A("    s_cmp_lg_u32 s25, 0")
    A("    s_cbranch_scc1 L_consumer")

    if PRIO: A(f"    s_setprio {PRIO}")
    GSH = {0: 8, 1: 8, 2: 8, 3: 12, 4: 13}[PAT]
    MAP = str(MAP)
    MAP12 = str(MAP12)
    if MAP12 != "": MAP = MAP12
    if MAP != "":
        ML = [int(ch, 16) + 8 for ch in MAP.replace("m", "")]
        assert sorted(ML) == list(range(8, 20 if MAP12 else 19)), ML
        A("    v_and_b32 v22, 1, v2")
        A(f"    v_lshlrev_b32 v22, {ML[0]}, v22")
        A("    v_lshrrev_b32 v3, 1, v2")
        A(f"    v_lshl_or_b32 v22, v3, {ML[1]}, v22")
        A("    v_xor_b32 v3, v1, v2                        ; j ^ g")
    else:
        A("    v_xor_b32 v3, v1, v2                        ; j ^ g")
        A(f"    v_lshlrev_b32 v22, {GSH}, v2")
    for p in range(4):
        A(f"    v_xor_b32 v23, {4*p}, v3")
        A(f"    v_lshl_add_u32 v{vKoff+p}, v23, 4, v22")
    A("    v_lshlrev_b32 v23, 1, v2")
    A("    v_xor_b32 v3, v1, v23                       ; j ^ 2g")
    for p in range(2):
        A(f"    v_xor_b32 v23, {8*p}, v3")
        A(f"    v_lshl_add_u32 v{vVoff+p}, v23, 4, v22")
    A("    v_lshlrev_b32 v12, 2, v0                    ; lane*4")
    A(f"    v_add_u32 v12, {F_FULL}, v12")
    A("    v_mov_b32 v13, 0")
    for k in range(8):
        A(f"    ds_write_b32 v12, v13 offset:{256 + 256*k}")
    A("    v_mov_b32 v14, 0x80000000")
    A("    ds_write_b32 v12, v14")
    if STATIC == 1:
        A("    s_bfe_u32 s23, s2, 0x10003                  ; (wg>>3)&1")
        A(f"    s_mul_i32 s23, s23, {DHI-DLO}")
        A(f"    s_add_u32 s23, s23, {DLO}")
        A("    v_mov_b32 v14, s23")
    elif STATIC == 2:
        A("    s_and_b32 s23, s2, 1")
        A(f"    s_mul_i32 s23, s23, {DHI-DLO}")
        A(f"    s_add_u32 s23, s23, {DLO}")
        A("    v_mov_b32 v14, s23")
    else:
        A(f"    v_mov_b32 v14, {DINIT}")
    A(f"    ds_write_b32 v12, v14 offset:{F_CTL-F_FULL}")
    A("    v_and_b32 v15, 3, v0")
    A("    v_lshlrev_b32 v15, 8, v15")
    A(f"    v_add_u32 v15, {F_FREE}, v15")
    A(f"    v_mov_b32 v14, {F_CTL}")
    A("    v_cmp_eq_u32 vcc, 4, v0")
    A("    v_cndmask_b32 v15, v15, v14, vcc")
    A("    ds_read_b32 v16, v15")
    A("    s_waitcnt lgkmcnt(0)")
    if not EARLY:
        A("    s_barrier")
    A("    s_add_u32 s4, s34, s62")
    A("    s_addc_u32 s5, s35, 0")
    A("    s_and_b32 s5, s5, 0xffff")
    A(f"    s_mov_b32 s6, {(0x80000 << HP) + 0x80000}")
    A("    s_mov_b32 s7, 0x20000")
    A("    s_add_u32 s8, s36, s62")
    A("    s_addc_u32 s9, s37, 0")
    A("    s_and_b32 s9, s9, 0xffff")
    A(f"    s_mov_b32 s10, {(0x80000 << HP) + 0x80000}")
    A("    s_mov_b32 s11, 0x20000")
    A("    s_mov_b32 s20, 0                            ; x (tile)")
    PBL = [int(ch) for ch in str(PB).zfill(3)]
    RBL = [b for b in range(7) if b not in PBL]
    def pg(p): return sum(((p >> k) & 1) << (12 + PBL[k]) for k in range(3))
    if JB != "":
        JBL = [int(ch) + 10 for ch in str(JB).zfill(5)]
        SBL = [int(ch) + 10 for ch in str(SB).zfill(4)] if SB != "" else [b for b in range(10, 19) if b not in JBL]
        assert sorted(JBL + SBL) == list(range(10, 19))
        RBL = [b - 12 for b in SBL]
    if MAP != "":
        JBL = ML[2:7]; RBL = [b - 12 for b in ML[7:]]
    def offj(j):
        if MAP != "": return sum(((j >> k) & 1) << JBL[k] for k in range(5))
        if JB != "": return sum(((j >> k) & 1) << JBL[k] for k in range(5))
        if PAT == 1: return pg(j & 7) + (j >> 3) * 1024
        if PAT == 2: return pg(j & 7) + (((j >> 3) + (j & 7)) & 3) * 1024
        if PAT == 0: return (j >> 2) * 4096 + (j & 3) * 1024
        if PAT == 1: return (j & 7) * 4096 + (j >> 3) * 1024
        if PAT == 2: return (j & 7) * 4096 + (((j >> 3) + (j & 7)) & 3) * 1024
        if PAT == 3: return (j & 1) * 16384 + (j >> 1) * 256
        if PAT == 4: return (j & 1) * 4096 + (j >> 1) * 256
    gof = (lambda g: ((g & 1) << ML[0]) | ((g >> 1) << ML[1])) if MAP != "" else (lambda g: g << GSH)
    if MAP12:
        assert sorted(offj(j) + gof(g) + sum(((sv >> m) & 1) << (12 + RBL[m]) for m in range(5)) for j in range(32) for g in range(4) for sv in range(32)) == [256 * r for r in range(4096)]
    else:
        assert sorted(offj(j) + gof(g) + sum(((sv >> m) & 1) << (12 + RBL[m]) for m in range(4)) for j in range(32) for g in range(4) for sv in range(16)) == [256 * r for r in range(2048)]
    NS = NT // 4
    if ROT == 2:
        A("    s_lshr_b32 s19, s2, 4")
    elif ROT == 8:
        A("    s_lshr_b32 s19, s2, 3")
    else:
        A("    s_mov_b32 s19, 0")
    A("    s_and_b32 s19, s19, 15")
    def emit_off():
        if MAP12:
            A("    s_mov_b32 s21, 0")
            for m in range(5):
                A(f"    s_bfe_u32 s27, s20, {1 << 16 | m}")
                A(f"    s_lshl_b32 s27, s27, {12 + RBL[m]}")
                A(f"    s_or_b32 s21, s21, s27")
            return
        A("    s_add_u32 s21, s20, s19")
        A("    s_and_b32 s21, s21, 15")
        if RBL == [3, 4, 5, 6] and HP == 0:
            A("    s_and_b32 s27, s20, 16")
            A("    s_or_b32 s21, s21, s27")
            A("    s_lshl_b32 s21, s21, 15")
        else:
            A("    s_and_b32 s27, s20, 16")
            A(f"    s_lshl_b32 s29, s27, {15 + HP}")
            for m in range(4):
                A(f"    s_bfe_u32 s27, s21, {1 << 16 | m}")
                A(f"    s_lshl_b32 s27, s27, {12 + RBL[m]}")
                A(f"    s_or_b32 s29, s29, s27")
            A("    s_mov_b32 s21, s29")
    A("    s_mov_b32 s20, 0")
    emit_off()
    A(f"    s_mov_b32 s22, 0x80000000")
    def dma(jj, D, wait):
        if KVI == 0:
            half = jj // 32; j = jj % 32
        elif KVI == 1:
            half = jj & 1; j = jj >> 1
        elif KVI == 2:
            half = (jj >> 3) & 1; j = (jj & 7) | ((jj >> 4) << 3)
        srd = "s[4:7]" if half == 0 else "s[8:11]"
        p = j
        if MAP12 and 19 in JBL:
            kb = JBL.index(19)
            rest = [k for k in range(5) if k != kb]
            p = (((j >> kb) & 1) << 4) | sum(((j >> k) & 1) << n for n, k in enumerate(rest))
        t = p >> 3; u = (p >> 2) & 1; i = p & 3
        A(f"    s_add_u32 m0, s26, {t*32768 + half*8192 + u*4096 + i*1024}")
        A(f"    s_add_u32 s30, s21, {offj(j)}")
        if wait:
            A(f"    s_waitcnt vmcnt({D-1})")
            if KVI == 0 and jj % 32 == (D - 1) % 32:
                c = (jj - (D - 1)) // 32
                A(f"    s_add_i32 s27, s24, {c}")
                A(f"    s_max_i32 s22, s22, s27")
                A(f"    v_mov_b32 v13, s22")
                A(f"    ds_write_b32 v12, v13")
            if KVI and jj == D - 1:
                A(f"    s_max_i32 s22, s22, s24")
                A(f"    v_mov_b32 v13, s22")
                A(f"    ds_write_b32 v12, v13")
            if jj == 56:
                A("    ds_read_b32 v16, v15")
        else:
            A("    s_nop 0")
        vo = (vKoff + i) if half == 0 else (vVoff + (i & 1))
        A(f"    buffer_load_dwordx4 v{vo}, {srd}, s30 offen{pol} lds")
    if PFV:
        A("    buffer_load_dword v19, v13, s[8:11], s21 offen")
    if EARLY:
        A("    s_mov_b32 s26, 0")
        A("    s_mov_b32 s24, 0")
        for jj in range(DINIT - 1):
            dma(jj, DINIT, False)
        if STAMP == 2:
            A("    s_memrealtime s[60:61]")
            A("    s_waitcnt lgkmcnt(0)")
            A("    v_writelane_b32 v17, s60, 0")
        A("    s_barrier")
        A(f"    s_branch L_enter")
    A(".p2align 6")
    A("L_ld:")
    A("    s_and_b32 s26, s20, 1")
    A("    s_lshl_b32 s26, s26, 14")
    A("    s_add_i32 s28, s20, -1")
    if STAMP == 2:
        A("    s_memrealtime s[60:61]")
    A("L_ld_chk:")
    A("    s_waitcnt lgkmcnt(0)")
    if STAMP == 2:
        A("    s_lshl_b32 m0, s20, 2")
        A("    s_bitcmp1_b32 s20, 4")
        A("    s_cbranch_scc1 L_st_hi")
        A("    v_writelane_b32 v17, s60, m0")
        A("    s_branch L_st_dn")
        A("L_st_hi:")
        A("    v_writelane_b32 v18, s60, m0")
        A("L_st_dn:")
    A("    v_cmp_gt_i32 vcc, s28, v16")
    A("    v_readlane_b32 s31, v16, 4")
    A("    s_lshl_b32 s24, s20, 1                      ; 2s")
    A("    s_nop 1")
    A("    s_and_b32 s27, vcc_lo, 15")
    A("    s_cbranch_scc0 L_ld_go")
    A("    s_sub_u32 s59, s59, 1")
    A("    s_cbranch_scc1 L_done")
    A("    ds_read_b32 v16, v15")
    A("    s_branch L_ld_chk")
    A("L_ld_go:")
    DS = list(range(DLO, DHI + 1))
    assert DHI <= 32
    XS = []
    if DIAG:
        A(f"    s_cmp_eq_u32 s20, 0")
        A(f"    s_cbranch_scc1 L_vardiag")
    if DST:
        A(f"    s_cmp_lt_u32 s20, {NST}")
        A(f"    s_cbranch_scc1 L_var{DST}")
        if DST not in DS: XS.append(DST)
    if FMAP:
        FM = [int(x) for x in str(FMAP).split("-")]
        A(f"    s_cmp_lt_u32 s20, {NS - NFIN}")
        A(f"    s_cbranch_scc1 L_norm")
        for i, f in enumerate(FM):
            if i < len(FM) - 1:
                A(f"    s_cmp_le_u32 s31, {DLO + i}")
                A(f"    s_cbranch_scc1 L_var{f}")
            else:
                A(f"    s_branch L_var{f}")
            if f not in DS and f not in XS: XS.append(f)
        A("L_norm:")
    if DFIN:
        A(f"    s_cmp_ge_u32 s20, {NS - NFIN}")
        A(f"    s_cbranch_scc1 L_var{DFIN}")
        if DFIN not in DS and DFIN not in XS: XS.append(DFIN)
        if DPRE:
            A(f"    s_cmp_ge_u32 s20, {NS - NFIN - NPRE}")
            A(f"    s_cbranch_scc1 L_var{DPRE}")
            if DPRE not in DS and DPRE not in XS: XS.append(DPRE)
    for D in DS[:-1]:
        A(f"    s_cmp_le_u32 s31, {D}")
        A(f"    s_cbranch_scc1 L_var{D}")
    if XS or DIAG:
        A(f"    s_branch L_var{DS[-1]}")
    if DIAG:
        A("L_vardiag:")
        pts = [0, 4, 8, 12, 16, 19, 20, 21, 22, 24, 28, 32, 36, 40, 48, 56, 63]
        prev = None
        for jj in range(64):
            dma(jj, DINIT, True)
            if jj in pts:
                if prev is not None:
                    A("    s_waitcnt lgkmcnt(0)")
                    A(f"    v_writelane_b32 v20, s60, {prev}")
                A("    s_memrealtime s[60:61]")
                prev = pts.index(jj)
        A("    s_waitcnt lgkmcnt(0)")
        A(f"    v_writelane_b32 v20, s60, {prev}")
        A("    s_add_u32 s20, s20, 1")
        emit_off()
        A("    s_branch L_ld")
    for D in XS + list(reversed(DS)):
        A(f"L_var{D}:")
        for jj in range(64):
            if EARLY and D == DINIT and jj == DINIT - 1:
                A("L_enter:")
            dma(jj, D, True)
        A("    s_add_u32 s20, s20, 1")
        emit_off()
        A(f"    s_cmp_lt_u32 s20, {NS}")
        A("    s_cbranch_scc1 L_ld")
        if D != DS[0]:
            A("    s_branch L_drain")
    A("L_drain:")
    for val in ((2 * NS - 1, 2 * NS) if KVI == 0 else (2 * NS,)):
        A(f"    s_waitcnt vmcnt({NS*64 - 32*val})")
        A(f"    s_max_i32 s22, s22, {val}")
        A(f"    v_mov_b32 v13, s22")
        A(f"    ds_write_b32 v12, v13")
    A("    s_waitcnt lgkmcnt(0)")
    if STAMP == 2:
        A("    s_mov_b32 s4, s46")
        A("    s_and_b32 s5, s47, 0xffff")
        A("    s_mov_b32 s6, 0x1000000")
        A("    s_mov_b32 s7, 0x20000")
        A("    s_lshl_b32 s20, s2, 9")
        A("    s_add_u32 s20, s20, 0x100000")
        A("    v_lshlrev_b32 v19, 2, v0")
        A("    buffer_store_dword v17, v19, s[4:7], s20 offen")
        A("    buffer_store_dword v18, v19, s[4:7], s20 offen offset:256")
        if DIAG:
            A("    s_lshl_b32 s20, s2, 8")
            A("    s_add_u32 s20, s20, 0x200000")
            A("    s_add_u32 s20, s20, 0x400000")
            A("    buffer_store_dword v20, v19, s[4:7], s20 offen")
    if STAMP:
        A("    s_branch L_stamp")
    else:
        A("    s_endpgm")

    if CTL == 1:
        import struct
        def f32(x): return "0x%08x" % struct.unpack("<I", struct.pack("<f", x))[0]
        def wait_full(sneed, tag):
            A(f"L_ck{tag}:")
            A("    ds_read_b32 v6, v4")
            A("    s_waitcnt lgkmcnt(0)")
            A("    v_readfirstlane_b32 s45, v6")
            A("    s_nop 1")
            A(f"    s_cmp_ge_i32 s45, {sneed}")
            A(f"    s_cbranch_scc1 L_ck{tag}_go")
            A("    s_sub_u32 s59, s59, 1")
            A("    s_cbranch_scc1 L_done")
            A(f"    s_sleep {CSLEEP}")
            A(f"    s_branch L_ck{tag}")
            A(f"L_ck{tag}_go:")
        ROWB = NPUB * STRIDE
        PSH = {64: 2, 32: 3, 16: 4, 8: 5}[NPUB]
        A("L_ctl:")
        A("    s_waitcnt lgkmcnt(0)")
        A("    s_barrier")
        A("    s_add_u32 s4, s46, 0x200000")
        A("    s_addc_u32 s5, s47, 0")
        if STAMP == 2 and DBG:
            A("    s_mov_b32 s8, s4")
            A("    s_and_b32 s9, s5, 0xffff")
            A("    s_mov_b32 s10, 0x100000")
            A("    s_mov_b32 s11, 0x20000")
        A(f"    v_mov_b32 v4, {F_FULL}")
        A(f"    v_mov_b32 v5, {F_CTL}")
        A(f"    s_lshr_b32 s26, s2, {PSH}                     ; l")
        A(f"    s_mul_i32 s33, s26, {STRIDE}")
        A(f"    s_xor_b32 s26, s26, s2")
        A(f"    s_and_b32 s32, s26, {(1 << PSH) - 1 if PSH <= 3 else 7}")
        if PSH > 3:
            A(f"    s_bfe_u32 s26, s2, {(PSH-3) << 16 | 3}")
            A("    s_or_b32 s32, s32, s26")
        A(f"    s_mov_b32 s20, {CK0//2}")
        A("    s_mov_b32 s44, 0")
        A(f"    s_mov_b32 s24, {NCK}")
        A(f"    s_mov_b32 s27, {f32(GAIN/100.0)}")
        A(f"    s_mov_b32 s28, {f32(DMID + 0.5 + KB * DREF)}")
        if KB:
            A(f"    v_mov_b32 v20, {f32(-KB)}")
            A(f"    v_mov_b32 v21, {f32(float(DINIT))}")
        if KI:
            A(f"    v_mov_b32 v22, 0")
            A(f"    v_mov_b32 v23, {f32(KI/100.0)}")
            A(f"    v_mov_b32 v24, {f32(IMAX)}")
        A(f"    s_mov_b32 s35, {2*WIN}")
        A("L_ckl:")
        wait_full("s20", "a")
        A("    s_memrealtime s[30:31]")
        A(f"    s_add_u32 s23, s20, {LAG//2}")
        A("    s_waitcnt lgkmcnt(0)")
        if not NOST:
            A("    s_cmp_lg_u32 s32, 0")
            A("    s_cbranch_scc1 L_ck_nopub")
            A("    s_mov_b32 s34, s30")
            A("    s_atomic_swap s34, s[4:5], s33")
            A("L_ck_nopub:")
        wait_full("s23", "b")
        if not NOLD:
            for l in range(NPUB):
                A(f"    s_load_dword s{64+l}, s[4:5], {l*STRIDE}")
        A(f"    s_sub_u32 s22, {WIN}, s30")
        A("    s_mov_b32 s25, 0                            ; sum")
        A("    s_mov_b32 s26, 0                            ; count")
        A("    s_waitcnt lgkmcnt(0)")
        for l in range(NPUB):
            A(f"    s_add_u32 s{64+l}, s{64+l}, s22")
            A(f"    s_cmp_lt_u32 s{64+l}, s35")
            A(f"    s_cselect_b32 s{64+l}, s{64+l}, 0")
            A(f"    s_addc_u32 s26, s26, 0")
            A(f"    s_add_u32 s25, s25, s{64+l}")
        A(f"    s_cmp_lt_u32 s26, {MINC}")
        A("    s_cbranch_scc1 L_ck_dbg")
        A(f"    s_mul_i32 s22, s26, {WIN}")
        A("    s_sub_i32 s25, s22, s25")
        A("    v_cvt_f32_i32 v10, s25")
        A("    v_cvt_f32_u32 v13, s26")
        A("    v_rcp_f32 v13, v13")
        A("    s_nop 0")
        A("    v_mul_f32 v10, v10, v13")
        if KI:
            A("    v_fma_f32 v22, v23, v10, v22")
            A("    v_max_f32 v22, 0, v22")
            A("    v_min_f32 v22, v22, v24")
        A("    v_mul_f32 v10, s27, v10")
        A("    v_add_f32 v10, s28, v10")
        if KB:
            A("    v_fma_f32 v10, v20, v21, v10")
        if KI:
            A("    v_add_f32 v10, v10, v22")
        A("    v_cvt_i32_f32 v10, v10")
        A(f"    v_max_i32 v10, {DLO}, v10")
        A(f"    v_min_i32 v10, {DHI}, v10")
        if FIXD:
            A(f"    v_mov_b32 v10, {DINIT}")
        A("    ds_write_b32 v5, v10")
        if KB:
            A("    v_cvt_f32_i32 v21, v10")
        A("L_ck_dbg:")
        if STAMP == 2 and DBG:
            A("    s_mov_b64 exec, 1")
            A("    s_lshl_b32 s25, s2, 6")
            A("    s_add_u32 s25, s25, s44")
            A("    s_add_u32 s25, s25, 0x80000")
            A("    v_mov_b32 v14, s25")
            A("    s_lshl_b32 s26, s26, 8")
            A("    v_or_b32 v13, s26, v10")
            A("    buffer_store_dword v13, v14, s[8:11], 0 offen")
            A("    s_mov_b64 exec, -1")
        A(f"    s_add_u32 s20, s20, {CKI//2}")
        A("    s_add_u32 s44, s44, 4")
        A(f"    s_add_u32 s4, s4, {ROWB}")
        A(f"    s_addc_u32 s5, s5, 0")
        A("    s_sub_u32 s24, s24, 1")
        A("    s_cmp_lg_u32 s24, 0")
        A("    s_cbranch_scc1 L_ckl")
        A("    s_waitcnt vmcnt(0) lgkmcnt(0)")
        A("    s_endpgm")

    A("L_consumer:")
    A("    s_sub_u32 s25, s25, 1                       ; c")
    A("    s_lshl_b32 s26, s25, 15")
    A("    v_lshlrev_b32 v22, 4, v2                    ; g*16")
    A("    v_lshl_add_u32 v23, v1, 8, v22              ; j*256 + g*16 (omega)")
    A("    v_and_b32 v3, 7, v1")
    A("    v_lshl_add_u32 v22, v3, 8, v22              ; (j&7)*256 + g*16 (q)")
    A("    s_waitcnt lgkmcnt(0)")
    A("    s_barrier")
    A("    s_add_u32 s12, s32, s63")
    A("    s_addc_u32 s13, s33, 0")
    A("    s_and_b32 s13, s13, 0xffff")
    A(f"    s_mov_b32 s14, {(2048 << HP) + 2048}")
    A("    s_mov_b32 s15, 0x20000")
    A(f"    s_mov_b32 s21, {2048 << HP}")
    A("    s_mov_b32 s16, s38")
    A("    s_and_b32 s17, s39, 0xffff")
    A("    s_mov_b32 s18, 4096")
    A("    s_mov_b32 s19, 0x20000")
    qnt = " nt" if QNT & 1 else ""
    ont = " nt" if QNT & 2 else ""
    if NOPRO in (0, 2):
        for t in range(4):
            A(f"    buffer_load_dwordx4 {vr(vOm+4*t,4)}, v23, s[16:19], 0 offen offset:{64*t}{ont}")
    if QSH == 2:
        A("    s_mul_i32 s21, s21, s25")
        A(f"    v_mov_b32 v{vPq+3}, v22")
    elif QSH:
        A("    s_cmp_ge_u32 s25, 2")
        A("    s_cbranch_scc1 L_noq")
        A("    s_mul_i32 s21, s21, s25")
        for t in range(4):
            A(f"    buffer_load_dwordx4 {vr(vV+4*t,4)}, v22, s[12:15], s21 offen offset:{64*t}{qnt}")
        A("L_noq:")
    elif NOPRO in (0, 3):
        for t in range(4):
            A(f"    buffer_load_dwordx4 {vr(vV+4*t,4)}, v22, s[12:15], 0 offen offset:{64*t}{qnt}")
        for t in range(4):
            A(f"    buffer_load_dwordx4 {vr(vV+16+4*t,4)}, v22, s[12:15], s21 offen offset:{64*t}{qnt}")
    A("    v_lshlrev_b32 v22, 8, v1                    ; j*256")
    A("    v_add_u32 v22, s26, v22")
    A("    v_xor_b32 v3, v1, v2                        ; j ^ g")
    for t in range(4):
        A(f"    v_xor_b32 v23, {4*t}, v3")
        A(f"    v_lshl_add_u32 v{vKad+t}, v23, 4, v22")
    A("    v_lshrrev_b32 v3, 2, v0                     ; 4g+r")
    A("    v_lshlrev_b32 v22, 8, v3                    ; row*256")
    A("    v_add_u32 v22, s26, v22")
    A("    v_and_b32 v23, 3, v0")
    A("    v_lshl_add_u32 v22, v23, 3, v22             ; + 8c4")
    A("    v_add_u32 v22, 8192, v22")
    A("    v_and_b32 v3, 7, v3                         ; s&7")
    A("    s_lshl_b32 s44, s25, 1                      ; 2c")
    for b in range(8):
        A(f"    s_add_u32 s45, s44, {b}")
        A(f"    s_and_b32 s45, s45, 7")
        A(f"    v_xor_b32 v23, s45, v3")
        A(f"    v_lshl_add_u32 v{vVad+b}, v23, 5, v22")
    A("    v_lshlrev_b32 v3, 4, v0                     ; lane*16")
    for k in range(1, 4):
        A(f"    s_add_u32 s45, s25, {k}")
        A(f"    s_and_b32 s45, s45, 3")
        A(f"    s_mul_i32 s45, s45, 6144")
        A(f"    s_add_u32 s45, s45, {SCR + (k-1)*2048}")
        A(f"    v_add_u32 v{vX+k-1}, s45, v3")
    A(f"    s_mul_i32 s45, s25, 6144")
    A(f"    s_add_u32 s45, s45, {SCR}")
    A(f"    v_add_u32 v{vX+3}, s45, v3")
    A(f"    s_lshl_b32 s45, s25, 10")
    A(f"    s_add_u32 s45, s45, {ZSC}")
    A(f"    v_add_u32 v{vX+4}, s45, v3")
    A(f"    v_add_u32 v{vX+5}, {ZSC}, v3")
    A("    v_lshlrev_b32 v3, 2, v0")
    A("    s_lshl_b32 s45, s25, 8")
    A(f"    s_add_u32 s45, s45, {F_FREE}")
    A(f"    v_add_u32 v{vX+6}, s45, v3")
    A("    v_and_b32 v3, 3, v0")
    A("    v_lshlrev_b32 v3, 8, v3")
    A(f"    v_add_u32 v{vX+7}, {F_DONE}, v3")
    A(f"    v_mov_b32 v{vFa}, {F_FULL}")
    A("    s_mov_b32 s27, 0xffff0000")
    A("    s_mov_b32 s28, 0x3e9837f0                   ; 128^-0.25 (f32)")
    A("    s_mov_b32 s29, 0x3e9837f0")
    A("    s_mov_b32 s30, 0x3fb8aa3b                   ; log2(e)")
    A("    s_mov_b32 s31, 0x3e800000                   ; 0.25")
    A(f"    v_mov_b32 v{vHalf}, 0.5")
    for i in range(4):
        A(f"    v_mov_b32 v{vOnes+i}, 0x3f803f80")
    A(f"    v_mov_b32 v{vC1}, 0x358637bd               ; 1e-6")

    def scale_regs(base, n, dacc):
        for i in range(n):
            t = vT + 2 * (i % 4)
            A(f"    v_lshlrev_b32 v{t}, 16, v{base+i}")
            A(f"    v_and_b32 v{t+1}, s27, v{base+i}")
            A(f"    v_pk_mul_f32 {vr(t,2)}, {vr(t,2)}, s[28:29]")
            A(f"    v_cvt_pk_bf16_f32 v{base+i}, v{t}, v{t+1}")
            if i == 0:
                A(f"    v_dot2_f32_bf16 v{dacc}, v{base+i}, v{base+i}, 0")
            else:
                A(f"    v_dot2_f32_bf16 v{dacc}, v{base+i}, v{base+i}, v{dacc}")

    def feat(P, S, O):
        t = vT + 8
        A(f"    v_cvt_pk_bf16_f32 v{t}, v{P}, v{P+1}")
        A(f"    v_cvt_pk_bf16_f32 v{t+1}, v{P+2}, v{P+3}")
        A(f"    v_cvt_pk_bf16_f32 v{t+2}, v{S}, v{S+1}")
        A(f"    v_cvt_pk_bf16_f32 v{t+3}, v{S+2}, v{S+3}")
        def unpack(dst, src0, src1):
            A(f"    v_lshlrev_b32 v{dst}, 16, v{src0}")
            A(f"    v_and_b32 v{dst+1}, s27, v{src0}")
            A(f"    v_lshlrev_b32 v{dst+2}, 16, v{src1}")
            A(f"    v_and_b32 v{dst+3}, s27, v{src1}")
        unpack(P, t, t + 1)
        unpack(S, t + 2, t + 3)
        for r in range(4):
            A(f"    v_sub_f32 v{P+r}, v{P+r}, v{S+r}")
        A(f"    v_cvt_pk_bf16_f32 v{t}, v{P}, v{P+1}")
        A(f"    v_cvt_pk_bf16_f32 v{t+1}, v{P+2}, v{P+3}")
        unpack(P, t, t + 1)
        for r in range(4):
            A(f"    v_mul_f32 v{P+r}, s30, v{P+r}")
        for r in range(4):
            A(f"    v_exp_f32 v{P+r}, v{P+r}")
        A("    s_nop 0")
        A(f"    v_cvt_pk_bf16_f32 v{t}, v{P}, v{P+1}")
        A(f"    v_cvt_pk_bf16_f32 v{t+1}, v{P+2}, v{P+3}")
        unpack(P, t, t + 1)
        for r in range(4):
            A(f"    v_fma_f32 v{P+r}, v{P+r}, s31, v{vC1}")
        A(f"    v_cvt_pk_bf16_f32 v{O}, v{P}, v{P+1}")
        A(f"    v_cvt_pk_bf16_f32 v{O+1}, v{P+2}, v{P+3}")

    def poll_full(sneed):
        l = lab("pf"); g = lab("pg")
        A(f"{l}:")
        A(f"    ds_read_b32 v{vFl}, v{vFa}")
        A("    s_waitcnt lgkmcnt(0)")
        A(f"    v_readfirstlane_b32 s45, v{vFl}")
        A("    s_nop 1")
        A(f"    s_cmp_ge_i32 s45, {sneed}")
        A(f"    s_cbranch_scc1 {g}")
        A("    s_sub_u32 s59, s59, 1")
        A("    s_cbranch_scc1 L_done")
        if SLEEP: A(f"    s_sleep {SLEEP}")
        A(f"    s_branch {l}")
        A(f"{g}:")

    A("    s_waitcnt vmcnt(0)")
    if QSH:
        A(f"    v_lshlrev_b32 v{vPq+2}, 3, v0")
        A(f"    v_add_u32 v{vPq+2}, {F_PQ}, v{vPq+2}")
        A("    s_cmp_ge_u32 s25, 2")
        A("    s_cbranch_scc1 L_noq2")
        if QSH == 2:
            poll_full(str(QLATE))
            for t in range(4):
                A(f"    buffer_load_dwordx4 {vr(vV+4*t,4)}, v{vPq+3}, s[12:15], s21 offen offset:{64*t}{qnt}")
            A("    s_waitcnt vmcnt(0)")
    for h in range(1 if QSH else 2):
        scale_regs(vV + 16 * h, 16, vD)
        A("    s_nop 2")
        for t in range(4):
            c = "0" if t == 0 else vr(vP, 4)
            A(f"    v_mfma_f32_16x16x32_bf16 {vr(vP,4)}, {vr(vOm+4*t,4)}, {vr(vV+16*h+4*t,4)}, {c}")
        A(f"    v_mfma_f32_16x16x4_f32 {vr(vS,4)}, v{vHalf}, v{vD}, 0")
        A("    s_nop 7")
        A("    s_nop 7")
        feat(vP, vS, vPq + 2 * h)
    if QSH:
        A("    s_lshl_b32 s44, s25, 9")
        A(f"    v_add_u32 v3, s44, v{vPq+2}")
        A(f"    ds_write_b64 v3, {vr(vPq,2)}")
        A("L_noq2:")

    A("    s_add_u32 s12, s40, s63")
    A("    s_addc_u32 s13, s41, 0")
    A("    s_and_b32 s13, s13, 0xffff")
    A("    s_mov_b32 s14, 2048")
    A("    s_mov_b32 s20, 1                            ; K needed: 2s+1")
    A("    s_mov_b32 s22, 0")
    A("    s_mov_b32 s23, 1                            ; epoch")
    A("L_bh:")
    for i in range(36):
        A(f"    v_mov_b32 v{vAcc+i}, 0")
    A("    s_mov_b32 s24, 16")
    A(".p2align 6")
    A("L_tile:")
    poll_full("s20")
    for u in range(2):
        for t in range(4):
            A(f"    ds_read_b128 {vr(vK+16*u+4*t,4)}, v{vKad+t} offset:{u*4096}")
    A("    s_add_u32 s21, s20, 1")
    A("    s_waitcnt lgkmcnt(0)")
    for u in range(2):
        scale_regs(vK + 16 * u, 16, vD + u)
    A("    s_nop 2")
    for u in range(2):
        for t in range(4):
            c = "0" if t == 0 else vr(vP + 4 * u, 4)
            A(f"    v_mfma_f32_16x16x32_bf16 {vr(vP+4*u,4)}, {vr(vK+16*u+4*t,4)}, {vr(vOm+4*t,4)}, {c}")
        A(f"    v_mfma_f32_16x16x4_f32 {vr(vS+4*u,4)}, v{vD+u}, v{vHalf}, 0")
    A("    s_nop 7")
    A("    s_nop 7")
    feat(vP, vS, vPhi)
    feat(vP + 4, vS + 4, vPhi + 2)
    poll_full("s21")
    for bb in range(8):
        for u in range(2):
            A(f"    ds_read_b64_tr_b16 {vr(vV+4*bb+2*u,2)}, v{vVad+bb} offset:{u*4096}")
    A("    s_add_u32 s22, s22, 1")
    A(f"    v_mov_b32 v{vFl}, s22")
    A("    s_waitcnt lgkmcnt(0)")
    A(f"    ds_write_b32 v{vX+6}, v{vFl}                ; free")
    for bb in range(8):
        A(f"    v_mfma_f32_16x16x32_bf16 {vr(vAcc+4*bb,4)}, {vr(vPhi,4)}, {vr(vV+4*bb,4)}, {vr(vAcc+4*bb,4)}")
    A(f"    v_mfma_f32_16x16x32_bf16 {vr(vZ,4)}, {vr(vPhi,4)}, {vr(vOnes,4)}, {vr(vZ,4)}")
    for t in range(4):
        A(f"    v_xor_b32 v{vKad+t}, 0x4000, v{vKad+t}")
    for b in range(8):
        A(f"    v_xor_b32 v{vVad+b}, 0x4000, v{vVad+b}")
    A("    s_add_u32 s20, s20, 2")
    A("    s_sub_u32 s24, s24, 1")
    A("    s_cmp_lg_u32 s24, 0")
    A("    s_cbranch_scc1 L_tile")

    A("    s_nop 7")
    for k in range(1, 4):
        for bb in range(2):
            A(f"    ds_write_b128 v{vX+k-1}, {vr(vAcc+8*k+4*bb,4)} offset:{bb*1024}")
    A(f"    ds_write_b128 v{vX+4}, {vr(vZ,4)}")
    A(f"    v_mov_b32 v{vFl}, s23")
    A("    s_waitcnt lgkmcnt(0)")
    A(f"    ds_write_b32 v{vX+6}, v{vFl} offset:1024")
    l = lab("pd")
    A(f"{l}:")
    A(f"    ds_read_b32 v{vFl}, v{vX+7}")
    A("    s_waitcnt lgkmcnt(0)")
    A("    s_sub_u32 s59, s59, 1")
    A("    s_cbranch_scc1 L_done")
    A(f"    v_cmp_gt_u32 vcc, s23, v{vFl}")
    A(f"    s_cbranch_vccnz {l}")
    for k in range(1, 4):
        for bb in range(2):
            A(f"    ds_read_b128 {vr(vK+8*(k-1)+4*bb,4)}, v{vX+3} offset:{(k-1)*2048+bb*1024}")
    for w in range(4):
        A(f"    ds_read_b128 {vr(vV+4*w,4)}, v{vX+5} offset:{w*1024}")
    if QSH:
        A(f"    ds_read_b64 {vr(vPq,2)}, v{vPq+2}")
    A("    v_lshlrev_b32 v3, 8, v1                     ; j*256")
    if ST16:
        A("    v_and_b32 v22, 1, v2")
        A("    v_lshl_add_u32 v3, v22, 5, v3               ; + (g&1)*32")
        A("    v_lshrrev_b32 v22, 1, v2")
        A("    v_lshl_add_u32 v3, v22, 4, v3               ; + (g>>1)*16")
    else:
        A("    v_lshl_add_u32 v3, v2, 3, v3                ; + g*8")
    A("    s_lshl_b32 s44, s25, 6")
    A("    v_add_u32 v3, s44, v3")
    A("    s_waitcnt lgkmcnt(0)")
    for k in range(1, 4):
        for bb in range(2):
            for r in range(4):
                A(f"    v_add_f32 v{vAcc+4*bb+r}, v{vAcc+4*bb+r}, v{vK+8*(k-1)+4*bb+r}")
    for w in range(1, 4):
        for r in range(4):
            A(f"    v_add_f32 v{vV+r}, v{vV+r}, v{vV+4*w+r}")
    for bb in range(2):
        A(f"    v_cvt_pk_bf16_f32 v{vT+2*bb}, v{vAcc+4*bb}, v{vAcc+4*bb+1}")
        A(f"    v_cvt_pk_bf16_f32 v{vT+2*bb+1}, v{vAcc+4*bb+2}, v{vAcc+4*bb+3}")
    A(f"    v_cvt_pk_bf16_f32 v{vT+8}, v{vV}, v{vV+1}")
    A(f"    v_cvt_pk_bf16_f32 v{vT+9}, v{vV+2}, v{vV+3}")
    A("    s_nop 1")
    for bb in range(2):
        A(f"    v_mfma_f32_16x16x16_bf16 {vr(vAcc+4*bb,4)}, {vr(vT+2*bb,2)}, {vr(vPq,2)}, 0")
    A(f"    v_mfma_f32_16x16x16_bf16 {vr(vZ,4)}, {vr(vT+8,2)}, {vr(vPq,2)}, 0")
    A("    s_nop 7")
    A("    s_nop 1")
    A(f"    v_cvt_pk_bf16_f32 v{vT}, v{vZ}, v{vZ}")
    A(f"    v_and_b32 v{vT}, s27, v{vT}")
    A(f"    v_add_f32 v{vT}, v{vT}, v{vC1}")
    A(f"    v_cvt_pk_bf16_f32 v{vT}, v{vT}, v{vT}")
    A(f"    v_and_b32 v{vT}, s27, v{vT}               ; den")
    A(f"    v_rcp_f32 v{vT+1}, v{vT}")
    for bb in range(2):
        a = vAcc + 4 * bb
        A(f"    v_cvt_pk_bf16_f32 v{vT+2}, v{a}, v{a+1}")
        A(f"    v_cvt_pk_bf16_f32 v{vT+3}, v{a+2}, v{a+3}")
        A(f"    v_lshlrev_b32 v{a}, 16, v{vT+2}")
        A(f"    v_and_b32 v{a+1}, s27, v{vT+2}")
        A(f"    v_lshlrev_b32 v{a+2}, 16, v{vT+3}")
        A(f"    v_and_b32 v{a+3}, s27, v{vT+3}")
        for r in range(4):
            A(f"    v_mul_f32 v{vT+4+r}, v{a+r}, v{vT+1}")
        for r in range(4):
            A(f"    v_fma_f32 v{vT+8+r}, -v{vT+4+r}, v{vT}, v{a+r}")
        for r in range(4):
            A(f"    v_fma_f32 v{vT+4+r}, v{vT+8+r}, v{vT+1}, v{vT+4+r}")
        for r in range(4):
            A(f"    v_div_fixup_f32 v{vT+4+r}, v{vT+4+r}, v{vT}, v{a+r}")
        stp = (" " + STP.replace("_", " ")) if STP else ""
        if ST16:
            A(f"    v_cvt_pk_bf16_f32 v{vAcc+8+2*bb}, v{vT+4}, v{vT+5}")
            A(f"    v_cvt_pk_bf16_f32 v{vAcc+9+2*bb}, v{vT+6}, v{vT+7}")
        else:
            A(f"    v_cvt_pk_bf16_f32 v{a}, v{vT+4}, v{vT+5}")
            A(f"    v_cvt_pk_bf16_f32 v{a+1}, v{vT+6}, v{vT+7}")
            A(f"    buffer_store_dwordx2 {vr(a,2)}, v3, s[12:15], 0 offen offset:{bb*32}{stp}")
    if ST16:
        A("    s_nop 1")
        A(f"    v_permlane16_swap_b32 v{vAcc+8}, v{vAcc+10}")
        A(f"    v_permlane16_swap_b32 v{vAcc+9}, v{vAcc+11}")
        A("    s_nop 1")
        A(f"    buffer_store_dwordx4 {vr(vAcc+8,4)}, v3, s[12:15], 0 offen{stp}")
        A("    s_nop 1")
    A("    s_cmp_eq_u32 s23, 2")
    A("    s_cbranch_scc1 L_fin")
    A("    s_mov_b32 s23, 2")
    A(f"    s_add_u32 s12, s12, {2048 << HP}")
    A("    s_addc_u32 s13, s13, 0")
    if QSH:
        A(f"    v_add_u32 v{vPq+2}, 512, v{vPq+2}")
    else:
        A(f"    v_mov_b32 v{vPq}, v{vPq+2}")
        A(f"    v_mov_b32 v{vPq+1}, v{vPq+3}")
    A("    s_branch L_bh")
    A("L_fin:")
    if STAMP:
        A("L_stamp:")
        A("    s_waitcnt vmcnt(0)")
        A("    s_memrealtime s[50:51]")
        A("    s_getreg_b32 s52, hwreg(HW_REG_XCC_ID)")
        A("    s_getreg_b32 s53, hwreg(HW_REG_HW_ID)")
        A("    s_waitcnt lgkmcnt(0)")
        A("    s_mov_b32 s44, s46")
        A("    s_and_b32 s45, s47, 0xffff")
        A("    s_mov_b32 s46, 0x100000")
        A("    s_mov_b32 s47, 0x20000")
        for i, s in enumerate((48, 49, 50, 51, 52, 53)):
            A(f"    v_mov_b32 v{40+i}, s{s}")
        A("    v_readfirstlane_b32 s55, v200") if False else None
        A(f"    s_mul_i32 s54, s2, 5")
        A("    s_add_u32 s54, s54, s58")
        A("    s_lshl_b32 s54, s54, 5")
        A("    v_mov_b32 v46, s54")
        A("    v_cmp_eq_u32 vcc, 0, v0")
        A("    s_and_saveexec_b64 s[56:57], vcc")
        A("    buffer_store_dwordx4 v[40:43], v46, s[44:47], 0 offen")
        A("    buffer_store_dwordx2 v[44:45], v46, s[44:47], 0 offen offset:16")
        A("    s_mov_b64 exec, s[56:57]")
    A("L_done:")
    A("    s_endpgm")
    A('.section .rodata,"a"')
    A(".p2align 6")
    A(".amdhsa_kernel standalone__linear_kernel_rfa__sampling_kernel")
    A(f"  .amdhsa_next_free_vgpr {NV}")
    A("  .amdhsa_next_free_sgpr 96")
    A(f"  .amdhsa_accum_offset {NV}")
    A("  .amdhsa_group_segment_fixed_size 0")
    A("  .amdhsa_kernarg_size 56")
    A("  .amdhsa_user_sgpr_count 2")
    A("  .amdhsa_user_sgpr_kernarg_segment_ptr 1")
    A("  .amdhsa_system_sgpr_workgroup_id_x 1")
    A("  .amdhsa_float_denorm_mode_32 3")
    A(".end_amdhsa_kernel")
    L2 = [x for x in L if x is not None]
    s = "\n".join(L2) + "\n"
    if STAMP:
        s = s.replace("    s_lshr_b32 s25, s25, 6                      ; wave id\n", "    s_lshr_b32 s25, s25, 6                      ; wave id\n    s_mov_b32 s58, s25\n")
    return s

if __name__ == "__main__":
    kw = {}
    out = sys.argv[1]
    for a in sys.argv[2:]:
        k, v = a.split("=")
        try: v = int(v)
        except ValueError:
            try: v = float(v)
            except ValueError: pass
        kw[k] = v
    open(out, "w").write(gen(**kw))
```

```python
import sys

def gen(DLO=18, DHI=22, DINIT=20, POL="nt", STAMP=0, SLEEP=1, PRIO=3, MIMIC=1, CTL=1, CK0=8, CKI=8, NCK=15, STATIC=0, CSLEEP=3, RMAP=0, CMODE=6, LAG=4, GAIN=2.0, DMID=20.0, WIN=400, STPOL="sc0 sc1", LDPOL="", NOST=0, NOLD=0, DBG=1, PUB=1, FIXD=0, STRIDE=128, MINC=4, NPUB=32, ROT=0, ORD=0, PAT=1, KVI=0, PB="012", JB="", SB="", MAP="", HP=0, EARLY=0, PFV=0, KB=0.0, DREF=20.5, KI=0.0, IMAX=3.0, LATE=0, GLATE=3.0, ST16=0, STP="", DFIN=0, NFIN=1, DPRE=0, NPRE=1, FMAP="", DST=0, NST=1, XP=0, MAP12="", DIAG=0, NOPRO=0, QNT=0, QSH=0, QLATE=1, LAST=0):
    NC = 4
    SLOTB = 16384
    RING = 8 * SLOTB
    SCR = RING
    ZSC = SCR + 24576
    FLG = ZSC + 4096
    F_FULL, F_FREE, F_DONE = FLG, FLG + 256, FLG + 256 + 1024
    F_CTL = FLG + 2304
    F_PQ = FLG + 2304 + 256
    LDS = FLG + 2304 + 256 + (1024 if QSH else 0)
    assert LDS <= 163840
    NT = 128
    pol = (" " + POL.replace("_", " ")) if POL and POL != "none" else ""
    L = []; A = L.append
    vKoff, vVoff, vKad, vVad = 4, 8, 10, 14
    vOm, vK, vV, vAcc, vZ = 24, 40, 72, 104, 136
    vP, vS, vT, vPhi, vPq = 140, 148, 156, 172, 176
    vHalf, vOnes, vC1, vD = 180, 184, 188, 190
    vFl, vFa = 22, 23
    vX = 192
    NV = 200
    def vr(b, n): return f"v[{b}:{b+n-1}]"
    uid = [0]
    def lab(p):
        uid[0] += 1
        return f"L_{p}{uid[0]}"

    A(f"; @launch grid=(256,1,1) block=({384 if CTL==1 else 320},1,1) lds={LDS}")
    A('.amdgcn_target "amdgcn-amd-amdhsa--gfx950"')
    A(".text")
    A(".globl standalone__linear_kernel_rfa__sampling_kernel")
    A(".p2align 8")
    A(".type standalone__linear_kernel_rfa__sampling_kernel,@function")
    A("standalone__linear_kernel_rfa__sampling_kernel:")
    A("    s_cmp_ge_u32 s2, 256")
    A("    s_cbranch_scc1 L_done")
    A("    s_load_dwordx8 s[32:39], s[0:1], 0          ; q, k, v, omega")
    A("    s_load_dwordx4 s[40:43], s[0:1], 32")
    A("    s_load_dwordx2 s[46:47], s[0:1], 48         ; ws")
    if STAMP:
        A("    s_memrealtime s[48:49]")
    A("    v_readfirstlane_b32 s25, v0")
    A("    v_and_b32 v0, 63, v0                        ; lane")
    A("    v_and_b32 v1, 15, v0                        ; j")
    A("    v_lshrrev_b32 v2, 4, v0                     ; g")
    A("    s_lshr_b32 s25, s25, 6")
    if XP == 1:
        A("    s_and_b32 s60, s2, 0xf0")
        A("    s_and_b32 s61, s2, 7")
        A("    s_lshl_b32 s61, s61, 1")
        A("    s_or_b32 s60, s60, s61")
        A("    s_bfe_u32 s61, s2, 0x10003")
        A("    s_or_b32 s60, s60, s61")
    elif XP == 2:
        A("    s_and_b32 s60, s2, 7")
        A("    s_lshl_b32 s60, s60, 5")
        A("    s_lshr_b32 s61, s2, 3")
        A("    s_or_b32 s60, s60, s61")
    else:
        A("    s_mov_b32 s60, s2")
    A(f"    s_lshr_b32 s62, s60, {HP}")
    A(f"    s_lshl_b32 s62, s62, {HP+1}")
    A(f"    s_and_b32 s63, s60, {(1 << HP) - 1}")
    A(f"    s_or_b32 s62, s62, s63")
    A(f"    s_lshl_b32 s63, s62, 11")
    A(f"    s_lshl_b32 s62, s62, 19")
    A("    s_mov_b32 s59, 0x200000")
    if CTL == 1:
        A("    s_cmp_eq_u32 s25, 5")
        A("    s_cbranch_scc1 L_ctl")
    A("    s_cmp_lg_u32 s25, 0")
    A("    s_cbranch_scc1 L_consumer")

    if PRIO: A(f"    s_setprio {PRIO}")
    GSH = {0: 8, 1: 8, 2: 8, 3: 12, 4: 13}[PAT]
    MAP = str(MAP)
    MAP12 = str(MAP12)
    if MAP12 != "": MAP = MAP12
    if MAP != "":
        ML = [int(ch, 16) + 8 for ch in MAP.replace("m", "")]
        assert sorted(ML) == list(range(8, 20 if MAP12 else 19)), ML
        A("    v_and_b32 v22, 1, v2")
        A(f"    v_lshlrev_b32 v22, {ML[0]}, v22")
        A("    v_lshrrev_b32 v3, 1, v2")
        A(f"    v_lshl_or_b32 v22, v3, {ML[1]}, v22")
        A("    v_xor_b32 v3, v1, v2                        ; j ^ g")
    else:
        A("    v_xor_b32 v3, v1, v2                        ; j ^ g")
        A(f"    v_lshlrev_b32 v22, {GSH}, v2")
    for p in range(4):
        A(f"    v_xor_b32 v23, {4*p}, v3")
        A(f"    v_lshl_add_u32 v{vKoff+p}, v23, 4, v22")
    A("    v_lshlrev_b32 v23, 1, v2")
    A("    v_xor_b32 v3, v1, v23                       ; j ^ 2g")
    for p in range(2):
        A(f"    v_xor_b32 v23, {8*p}, v3")
        A(f"    v_lshl_add_u32 v{vVoff+p}, v23, 4, v22")
    A("    v_lshlrev_b32 v12, 2, v0                    ; lane*4")
    A(f"    v_add_u32 v12, {F_FULL}, v12")
    A("    v_mov_b32 v13, 0")
    for k in range(8):
        A(f"    ds_write_b32 v12, v13 offset:{256 + 256*k}")
    A("    v_mov_b32 v14, 0x80000000")
    A("    ds_write_b32 v12, v14")
    if STATIC == 1:
        A("    s_bfe_u32 s23, s2, 0x10003                  ; (wg>>3)&1")
        A(f"    s_mul_i32 s23, s23, {DHI-DLO}")
        A(f"    s_add_u32 s23, s23, {DLO}")
        A("    v_mov_b32 v14, s23")
    elif STATIC == 2:
        A("    s_and_b32 s23, s2, 1")
        A(f"    s_mul_i32 s23, s23, {DHI-DLO}")
        A(f"    s_add_u32 s23, s23, {DLO}")
        A("    v_mov_b32 v14, s23")
    else:
        A(f"    v_mov_b32 v14, {DINIT}")
    A(f"    ds_write_b32 v12, v14 offset:{F_CTL-F_FULL}")
    A("    v_and_b32 v15, 3, v0")
    A("    v_lshlrev_b32 v15, 8, v15")
    A(f"    v_add_u32 v15, {F_FREE}, v15")
    A(f"    v_mov_b32 v14, {F_CTL}")
    A("    v_cmp_eq_u32 vcc, 4, v0")
    A("    v_cndmask_b32 v15, v15, v14, vcc")
    A("    ds_read_b32 v16, v15")
    A("    s_waitcnt lgkmcnt(0)")
    if not EARLY:
        A("    s_barrier")
    A("    s_add_u32 s4, s34, s62")
    A("    s_addc_u32 s5, s35, 0")
    A("    s_and_b32 s5, s5, 0xffff")
    A(f"    s_mov_b32 s6, {(0x80000 << HP) + 0x80000}")
    A("    s_mov_b32 s7, 0x20000")
    A("    s_add_u32 s8, s36, s62")
    A("    s_addc_u32 s9, s37, 0")
    A("    s_and_b32 s9, s9, 0xffff")
    A(f"    s_mov_b32 s10, {(0x80000 << HP) + 0x80000}")
    A("    s_mov_b32 s11, 0x20000")
    A("    s_mov_b32 s20, 0                            ; x (tile)")
    PBL = [int(ch) for ch in str(PB).zfill(3)]
    RBL = [b for b in range(7) if b not in PBL]
    def pg(p): return sum(((p >> k) & 1) << (12 + PBL[k]) for k in range(3))
    if JB != "":
        JBL = [int(ch) + 10 for ch in str(JB).zfill(5)]
        SBL = [int(ch) + 10 for ch in str(SB).zfill(4)] if SB != "" else [b for b in range(10, 19) if b not in JBL]
        assert sorted(JBL + SBL) == list(range(10, 19))
        RBL = [b - 12 for b in SBL]
    if MAP != "":
        JBL = ML[2:7]; RBL = [b - 12 for b in ML[7:]]
    def offj(j):
        if MAP != "": return sum(((j >> k) & 1) << JBL[k] for k in range(5))
        if JB != "": return sum(((j >> k) & 1) << JBL[k] for k in range(5))
        if PAT == 1: return pg(j & 7) + (j >> 3) * 1024
        if PAT == 2: return pg(j & 7) + (((j >> 3) + (j & 7)) & 3) * 1024
        if PAT == 0: return (j >> 2) * 4096 + (j & 3) * 1024
        if PAT == 1: return (j & 7) * 4096 + (j >> 3) * 1024
        if PAT == 2: return (j & 7) * 4096 + (((j >> 3) + (j & 7)) & 3) * 1024
        if PAT == 3: return (j & 1) * 16384 + (j >> 1) * 256
        if PAT == 4: return (j & 1) * 4096 + (j >> 1) * 256
    gof = (lambda g: ((g & 1) << ML[0]) | ((g >> 1) << ML[1])) if MAP != "" else (lambda g: g << GSH)
    if MAP12:
        assert sorted(offj(j) + gof(g) + sum(((sv >> m) & 1) << (12 + RBL[m]) for m in range(5)) for j in range(32) for g in range(4) for sv in range(32)) == [256 * r for r in range(4096)]
    else:
        assert sorted(offj(j) + gof(g) + sum(((sv >> m) & 1) << (12 + RBL[m]) for m in range(4)) for j in range(32) for g in range(4) for sv in range(16)) == [256 * r for r in range(2048)]
    NS = NT // 4
    if ROT == 2:
        A("    s_lshr_b32 s19, s2, 4")
    elif ROT == 8:
        A("    s_lshr_b32 s19, s2, 3")
    else:
        A("    s_mov_b32 s19, 0")
    A("    s_and_b32 s19, s19, 15")
    def emit_off():
        if MAP12:
            A("    s_mov_b32 s21, 0")
            for m in range(5):
                A(f"    s_bfe_u32 s27, s20, {1 << 16 | m}")
                A(f"    s_lshl_b32 s27, s27, {12 + RBL[m]}")
                A(f"    s_or_b32 s21, s21, s27")
            return
        A("    s_add_u32 s21, s20, s19")
        A("    s_and_b32 s21, s21, 15")
        if RBL == [3, 4, 5, 6] and HP == 0:
            A("    s_and_b32 s27, s20, 16")
            A("    s_or_b32 s21, s21, s27")
            A("    s_lshl_b32 s21, s21, 15")
        else:
            A("    s_and_b32 s27, s20, 16")
            A(f"    s_lshl_b32 s29, s27, {15 + HP}")
            for m in range(4):
                A(f"    s_bfe_u32 s27, s21, {1 << 16 | m}")
                A(f"    s_lshl_b32 s27, s27, {12 + RBL[m]}")
                A(f"    s_or_b32 s29, s29, s27")
            A("    s_mov_b32 s21, s29")
    A("    s_mov_b32 s20, 0")
    emit_off()
    A(f"    s_mov_b32 s22, 0x80000000")
    def dma(jj, D, wait):
        if KVI == 0:
            half = jj // 32; j = jj % 32
        elif KVI == 1:
            half = jj & 1; j = jj >> 1
        elif KVI == 2:
            half = (jj >> 3) & 1; j = (jj & 7) | ((jj >> 4) << 3)
        srd = "s[4:7]" if half == 0 else "s[8:11]"
        p = j
        if MAP12 and 19 in JBL:
            kb = JBL.index(19)
            rest = [k for k in range(5) if k != kb]
            p = (((j >> kb) & 1) << 4) | sum(((j >> k) & 1) << n for n, k in enumerate(rest))
        t = p >> 3; u = (p >> 2) & 1; i = p & 3
        A(f"    s_add_u32 m0, s26, {t*32768 + half*8192 + u*4096 + i*1024}")
        A(f"    s_add_u32 s30, s21, {offj(j)}")
        if wait:
            A(f"    s_waitcnt vmcnt({D-1})")
            if KVI == 0 and jj % 32 == (D - 1) % 32:
                c = (jj - (D - 1)) // 32
                A(f"    s_add_i32 s27, s24, {c}")
                A(f"    s_max_i32 s22, s22, s27")
                A(f"    v_mov_b32 v13, s22")
                A(f"    ds_write_b32 v12, v13")
            if KVI and jj == D - 1:
                A(f"    s_max_i32 s22, s22, s24")
                A(f"    v_mov_b32 v13, s22")
                A(f"    ds_write_b32 v12, v13")
            if jj == 56:
                A("    ds_read_b32 v16, v15")
        else:
            A("    s_nop 0")
        vo = (vKoff + i) if half == 0 else (vVoff + (i & 1))
        A(f"    buffer_load_dwordx4 v{vo}, {srd}, s30 offen{pol} lds")
    if PFV:
        A("    buffer_load_dword v19, v13, s[8:11], s21 offen")
    if EARLY:
        A("    s_mov_b32 s26, 0")
        A("    s_mov_b32 s24, 0")
        for jj in range(DINIT - 1):
            dma(jj, DINIT, False)
        if STAMP == 2:
            A("    s_memrealtime s[60:61]")
            A("    s_waitcnt lgkmcnt(0)")
            A("    v_writelane_b32 v17, s60, 0")
        A("    s_barrier")
        A(f"    s_branch L_enter")
    A(".p2align 6")
    A("L_ld:")
    A("    s_and_b32 s26, s20, 1")
    A("    s_lshl_b32 s26, s26, 14")
    A("    s_add_i32 s28, s20, -1")
    if STAMP == 2:
        A("    s_memrealtime s[60:61]")
    A("L_ld_chk:")
    A("    s_waitcnt lgkmcnt(0)")
    if STAMP == 2:
        A("    s_lshl_b32 m0, s20, 2")
        A("    s_bitcmp1_b32 s20, 4")
        A("    s_cbranch_scc1 L_st_hi")
        A("    v_writelane_b32 v17, s60, m0")
        A("    s_branch L_st_dn")
        A("L_st_hi:")
        A("    v_writelane_b32 v18, s60, m0")
        A("L_st_dn:")
    A("    v_cmp_gt_i32 vcc, s28, v16")
    A("    v_readlane_b32 s31, v16, 4")
    A("    s_lshl_b32 s24, s20, 1                      ; 2s")
    A("    s_nop 1")
    A("    s_and_b32 s27, vcc_lo, 15")
    A("    s_cbranch_scc0 L_ld_go")
    A("    s_sub_u32 s59, s59, 1")
    A("    s_cbranch_scc1 L_done")
    A("    ds_read_b32 v16, v15")
    A("    s_branch L_ld_chk")
    A("L_ld_go:")
    DS = list(range(DLO, DHI + 1))
    assert DHI <= 32
    XS = []
    if DIAG:
        A(f"    s_cmp_eq_u32 s20, 0")
        A(f"    s_cbranch_scc1 L_vardiag")
    if DST:
        A(f"    s_cmp_lt_u32 s20, {NST}")
        A(f"    s_cbranch_scc1 L_var{DST}")
        if DST not in DS: XS.append(DST)
    if FMAP:
        FM = [int(x) for x in str(FMAP).split("-")]
        A(f"    s_cmp_lt_u32 s20, {NS - NFIN}")
        A(f"    s_cbranch_scc1 L_norm")
        for i, f in enumerate(FM):
            if i < len(FM) - 1:
                A(f"    s_cmp_le_u32 s31, {DLO + i}")
                A(f"    s_cbranch_scc1 L_var{f}")
            else:
                A(f"    s_branch L_var{f}")
            if f not in DS and f not in XS: XS.append(f)
        A("L_norm:")
    if DFIN:
        A(f"    s_cmp_ge_u32 s20, {NS - NFIN}")
        A(f"    s_cbranch_scc1 L_var{DFIN}")
        if DFIN not in DS and DFIN not in XS: XS.append(DFIN)
        if DPRE:
            A(f"    s_cmp_ge_u32 s20, {NS - NFIN - NPRE}")
            A(f"    s_cbranch_scc1 L_var{DPRE}")
            if DPRE not in DS and DPRE not in XS: XS.append(DPRE)
    for D in DS[:-1]:
        A(f"    s_cmp_le_u32 s31, {D}")
        A(f"    s_cbranch_scc1 L_var{D}")
    if XS or DIAG:
        A(f"    s_branch L_var{DS[-1]}")
    if DIAG:
        A("L_vardiag:")
        pts = [0, 4, 8, 12, 16, 19, 20, 21, 22, 24, 28, 32, 36, 40, 48, 56, 63]
        prev = None
        for jj in range(64):
            dma(jj, DINIT, True)
            if jj in pts:
                if prev is not None:
                    A("    s_waitcnt lgkmcnt(0)")
                    A(f"    v_writelane_b32 v20, s60, {prev}")
                A("    s_memrealtime s[60:61]")
                prev = pts.index(jj)
        A("    s_waitcnt lgkmcnt(0)")
        A(f"    v_writelane_b32 v20, s60, {prev}")
        A("    s_add_u32 s20, s20, 1")
        emit_off()
        A("    s_branch L_ld")
    for D in XS + list(reversed(DS)):
        A(f"L_var{D}:")
        for jj in range(64):
            if EARLY and D == DINIT and jj == DINIT - 1:
                A("L_enter:")
            dma(jj, D, True)
        A("    s_add_u32 s20, s20, 1")
        emit_off()
        A(f"    s_cmp_lt_u32 s20, {NS}")
        A("    s_cbranch_scc1 L_ld")
        if D != DS[0]:
            A("    s_branch L_drain")
    A("L_drain:")
    for val in ((2 * NS - 1, 2 * NS) if KVI == 0 else (2 * NS,)):
        A(f"    s_waitcnt vmcnt({NS*64 - 32*val})")
        A(f"    s_max_i32 s22, s22, {val}")
        A(f"    v_mov_b32 v13, s22")
        A(f"    ds_write_b32 v12, v13")
        if DIAG:
            A("    s_memrealtime s[60:61]")
            A("    s_waitcnt lgkmcnt(0)")
            A(f"    v_writelane_b32 v20, s60, {17 + (val & 1 ^ 1)}")
    A("    s_waitcnt lgkmcnt(0)")
    if STAMP == 2:
        A("    s_mov_b32 s4, s46")
        A("    s_and_b32 s5, s47, 0xffff")
        A("    s_mov_b32 s6, 0x1000000")
        A("    s_mov_b32 s7, 0x20000")
        A("    s_lshl_b32 s20, s2, 9")
        A("    s_add_u32 s20, s20, 0x100000")
        A("    v_lshlrev_b32 v19, 2, v0")
        A("    buffer_store_dword v17, v19, s[4:7], s20 offen")
        A("    buffer_store_dword v18, v19, s[4:7], s20 offen offset:256")
        if DIAG:
            A("    s_lshl_b32 s20, s2, 8")
            A("    s_add_u32 s20, s20, 0x200000")
            A("    s_add_u32 s20, s20, 0x400000")
            A("    buffer_store_dword v20, v19, s[4:7], s20 offen")
    if STAMP:
        A("    s_branch L_stamp")
    else:
        A("    s_endpgm")

    if CTL == 1:
        import struct
        def f32(x): return "0x%08x" % struct.unpack("<I", struct.pack("<f", x))[0]
        def wait_full(sneed, tag):
            A(f"L_ck{tag}:")
            A("    ds_read_b32 v6, v4")
            A("    s_waitcnt lgkmcnt(0)")
            A("    v_readfirstlane_b32 s45, v6")
            A("    s_nop 1")
            A(f"    s_cmp_ge_i32 s45, {sneed}")
            A(f"    s_cbranch_scc1 L_ck{tag}_go")
            A("    s_sub_u32 s59, s59, 1")
            A("    s_cbranch_scc1 L_done")
            A(f"    s_sleep {CSLEEP}")
            A(f"    s_branch L_ck{tag}")
            A(f"L_ck{tag}_go:")
        ROWB = NPUB * STRIDE
        PSH = {64: 2, 32: 3, 16: 4, 8: 5}[NPUB]
        A("L_ctl:")
        A("    s_waitcnt lgkmcnt(0)")
        A("    s_barrier")
        A("    s_add_u32 s4, s46, 0x200000")
        A("    s_addc_u32 s5, s47, 0")
        if STAMP == 2 and DBG:
            A("    s_mov_b32 s8, s4")
            A("    s_and_b32 s9, s5, 0xffff")
            A("    s_mov_b32 s10, 0x100000")
            A("    s_mov_b32 s11, 0x20000")
        A(f"    v_mov_b32 v4, {F_FULL}")
        A(f"    v_mov_b32 v5, {F_CTL}")
        A(f"    s_lshr_b32 s26, s2, {PSH}                     ; l")
        A(f"    s_mul_i32 s33, s26, {STRIDE}")
        A(f"    s_xor_b32 s26, s26, s2")
        A(f"    s_and_b32 s32, s26, {(1 << PSH) - 1 if PSH <= 3 else 7}")
        if PSH > 3:
            A(f"    s_bfe_u32 s26, s2, {(PSH-3) << 16 | 3}")
            A("    s_or_b32 s32, s32, s26")
        A(f"    s_mov_b32 s20, {CK0//2}")
        A("    s_mov_b32 s44, 0")
        A(f"    s_mov_b32 s24, {NCK}")
        A(f"    s_mov_b32 s27, {f32(GAIN/100.0)}")
        A(f"    s_mov_b32 s28, {f32(DMID + 0.5 + KB * DREF)}")
        if KB:
            A(f"    v_mov_b32 v20, {f32(-KB)}")
            A(f"    v_mov_b32 v21, {f32(float(DINIT))}")
        if KI:
            A(f"    v_mov_b32 v22, 0")
            A(f"    v_mov_b32 v23, {f32(KI/100.0)}")
            A(f"    v_mov_b32 v24, {f32(IMAX)}")
        A(f"    s_mov_b32 s35, {2*WIN}")
        A("L_ckl:")
        wait_full("s20", "a")
        A("    s_memrealtime s[30:31]")
        A(f"    s_add_u32 s23, s20, {LAG//2}")
        A("    s_waitcnt lgkmcnt(0)")
        if not NOST:
            A("    s_cmp_lg_u32 s32, 0")
            A("    s_cbranch_scc1 L_ck_nopub")
            A("    s_mov_b32 s34, s30")
            A("    s_atomic_swap s34, s[4:5], s33")
            A("L_ck_nopub:")
        wait_full("s23", "b")
        if not NOLD:
            for l in range(NPUB):
                A(f"    s_load_dword s{64+l}, s[4:5], {l*STRIDE}")
        A(f"    s_sub_u32 s22, {WIN}, s30")
        A("    s_mov_b32 s25, 0                            ; sum")
        A("    s_mov_b32 s26, 0                            ; count")
        A("    s_waitcnt lgkmcnt(0)")
        for l in range(NPUB):
            A(f"    s_add_u32 s{64+l}, s{64+l}, s22")
            A(f"    s_cmp_lt_u32 s{64+l}, s35")
            A(f"    s_cselect_b32 s{64+l}, s{64+l}, 0")
            A(f"    s_addc_u32 s26, s26, 0")
            A(f"    s_add_u32 s25, s25, s{64+l}")
        A(f"    s_cmp_lt_u32 s26, {MINC}")
        A("    s_cbranch_scc1 L_ck_dbg")
        A(f"    s_mul_i32 s22, s26, {WIN}")
        A("    s_sub_i32 s25, s22, s25")
        A("    v_cvt_f32_i32 v10, s25")
        A("    v_cvt_f32_u32 v13, s26")
        A("    v_rcp_f32 v13, v13")
        A("    s_nop 0")
        A("    v_mul_f32 v10, v10, v13")
        if KI:
            A("    v_fma_f32 v22, v23, v10, v22")
            A("    v_max_f32 v22, 0, v22")
            A("    v_min_f32 v22, v22, v24")
        A("    v_mul_f32 v10, s27, v10")
        A("    v_add_f32 v10, s28, v10")
        if KB:
            A("    v_fma_f32 v10, v20, v21, v10")
        if KI:
            A("    v_add_f32 v10, v10, v22")
        A("    v_cvt_i32_f32 v10, v10")
        A(f"    v_max_i32 v10, {DLO}, v10")
        A(f"    v_min_i32 v10, {DHI}, v10")
        if FIXD:
            A(f"    v_mov_b32 v10, {DINIT}")
        A("    ds_write_b32 v5, v10")
        if KB:
            A("    v_cvt_f32_i32 v21, v10")
        A("L_ck_dbg:")
        if STAMP == 2 and DBG:
            A("    s_mov_b64 exec, 1")
            A("    s_lshl_b32 s25, s2, 6")
            A("    s_add_u32 s25, s25, s44")
            A("    s_add_u32 s25, s25, 0x80000")
            A("    v_mov_b32 v14, s25")
            A("    s_lshl_b32 s26, s26, 8")
            A("    v_or_b32 v13, s26, v10")
            A("    buffer_store_dword v13, v14, s[8:11], 0 offen")
            A("    s_mov_b64 exec, -1")
        A(f"    s_add_u32 s20, s20, {CKI//2}")
        A("    s_add_u32 s44, s44, 4")
        A(f"    s_add_u32 s4, s4, {ROWB}")
        A(f"    s_addc_u32 s5, s5, 0")
        A("    s_sub_u32 s24, s24, 1")
        A("    s_cmp_lg_u32 s24, 0")
        A("    s_cbranch_scc1 L_ckl")
        A("    s_waitcnt vmcnt(0) lgkmcnt(0)")
        A("    s_endpgm")

    A("L_consumer:")
    A("    s_sub_u32 s25, s25, 1                       ; c")
    A("    s_lshl_b32 s26, s25, 15")
    A("    v_lshlrev_b32 v22, 4, v2                    ; g*16")
    A("    v_lshl_add_u32 v23, v1, 8, v22              ; j*256 + g*16 (omega)")
    A("    v_and_b32 v3, 7, v1")
    A("    v_lshl_add_u32 v22, v3, 8, v22              ; (j&7)*256 + g*16 (q)")
    A("    s_waitcnt lgkmcnt(0)")
    A("    s_barrier")
    A("    s_add_u32 s12, s32, s63")
    A("    s_addc_u32 s13, s33, 0")
    A("    s_and_b32 s13, s13, 0xffff")
    A(f"    s_mov_b32 s14, {(2048 << HP) + 2048}")
    A("    s_mov_b32 s15, 0x20000")
    A(f"    s_mov_b32 s21, {2048 << HP}")
    A("    s_mov_b32 s16, s38")
    A("    s_and_b32 s17, s39, 0xffff")
    A("    s_mov_b32 s18, 4096")
    A("    s_mov_b32 s19, 0x20000")
    qnt = " nt" if QNT & 1 else ""
    ont = " nt" if QNT & 2 else ""
    if NOPRO in (0, 2):
        for t in range(4):
            A(f"    buffer_load_dwordx4 {vr(vOm+4*t,4)}, v23, s[16:19], 0 offen offset:{64*t}{ont}")
    if QSH == 2:
        A("    s_mul_i32 s21, s21, s25")
        A(f"    v_mov_b32 v{vPq+3}, v22")
    elif QSH:
        A("    s_cmp_ge_u32 s25, 2")
        A("    s_cbranch_scc1 L_noq")
        A("    s_mul_i32 s21, s21, s25")
        for t in range(4):
            A(f"    buffer_load_dwordx4 {vr(vV+4*t,4)}, v22, s[12:15], s21 offen offset:{64*t}{qnt}")
        A("L_noq:")
    elif NOPRO in (0, 3):
        for t in range(4):
            A(f"    buffer_load_dwordx4 {vr(vV+4*t,4)}, v22, s[12:15], 0 offen offset:{64*t}{qnt}")
        for t in range(4):
            A(f"    buffer_load_dwordx4 {vr(vV+16+4*t,4)}, v22, s[12:15], s21 offen offset:{64*t}{qnt}")
    A("    v_lshlrev_b32 v22, 8, v1                    ; j*256")
    A("    v_add_u32 v22, s26, v22")
    A("    v_xor_b32 v3, v1, v2                        ; j ^ g")
    for t in range(4):
        A(f"    v_xor_b32 v23, {4*t}, v3")
        A(f"    v_lshl_add_u32 v{vKad+t}, v23, 4, v22")
    A("    v_lshrrev_b32 v3, 2, v0                     ; 4g+r")
    A("    v_lshlrev_b32 v22, 8, v3                    ; row*256")
    A("    v_add_u32 v22, s26, v22")
    A("    v_and_b32 v23, 3, v0")
    A("    v_lshl_add_u32 v22, v23, 3, v22             ; + 8c4")
    A("    v_add_u32 v22, 8192, v22")
    A("    v_and_b32 v3, 7, v3                         ; s&7")
    A("    s_lshl_b32 s44, s25, 1                      ; 2c")
    for b in range(8):
        A(f"    s_add_u32 s45, s44, {b}")
        A(f"    s_and_b32 s45, s45, 7")
        A(f"    v_xor_b32 v23, s45, v3")
        A(f"    v_lshl_add_u32 v{vVad+b}, v23, 5, v22")
    A("    v_lshlrev_b32 v3, 4, v0                     ; lane*16")
    for k in range(1, 4):
        A(f"    s_add_u32 s45, s25, {k}")
        A(f"    s_and_b32 s45, s45, 3")
        A(f"    s_mul_i32 s45, s45, 6144")
        A(f"    s_add_u32 s45, s45, {SCR + (k-1)*2048}")
        A(f"    v_add_u32 v{vX+k-1}, s45, v3")
    A(f"    s_mul_i32 s45, s25, 6144")
    A(f"    s_add_u32 s45, s45, {SCR}")
    A(f"    v_add_u32 v{vX+3}, s45, v3")
    A(f"    s_lshl_b32 s45, s25, 10")
    A(f"    s_add_u32 s45, s45, {ZSC}")
    A(f"    v_add_u32 v{vX+4}, s45, v3")
    A(f"    v_add_u32 v{vX+5}, {ZSC}, v3")
    A("    v_lshlrev_b32 v3, 2, v0")
    A("    s_lshl_b32 s45, s25, 8")
    A(f"    s_add_u32 s45, s45, {F_FREE}")
    A(f"    v_add_u32 v{vX+6}, s45, v3")
    A("    v_and_b32 v3, 3, v0")
    A("    v_lshlrev_b32 v3, 8, v3")
    A(f"    v_add_u32 v{vX+7}, {F_DONE}, v3")
    A(f"    v_mov_b32 v{vFa}, {F_FULL}")
    A("    s_mov_b32 s27, 0xffff0000")
    A("    s_mov_b32 s28, 0x3e9837f0                   ; 128^-0.25 (f32)")
    A("    s_mov_b32 s29, 0x3e9837f0")
    A("    s_mov_b32 s30, 0x3fb8aa3b                   ; log2(e)")
    A("    s_mov_b32 s31, 0x3e800000                   ; 0.25")
    A(f"    v_mov_b32 v{vHalf}, 0.5")
    for i in range(4):
        A(f"    v_mov_b32 v{vOnes+i}, 0x3f803f80")
    A(f"    v_mov_b32 v{vC1}, 0x358637bd               ; 1e-6")

    def scale_regs(base, n, dacc):
        for i in range(n):
            t = vT + 2 * (i % 4)
            A(f"    v_lshlrev_b32 v{t}, 16, v{base+i}")
            A(f"    v_and_b32 v{t+1}, s27, v{base+i}")
            A(f"    v_pk_mul_f32 {vr(t,2)}, {vr(t,2)}, s[28:29]")
            A(f"    v_cvt_pk_bf16_f32 v{base+i}, v{t}, v{t+1}")
            if i == 0:
                A(f"    v_dot2_f32_bf16 v{dacc}, v{base+i}, v{base+i}, 0")
            else:
                A(f"    v_dot2_f32_bf16 v{dacc}, v{base+i}, v{base+i}, v{dacc}")

    def feat(P, S, O):
        t = vT + 8
        A(f"    v_cvt_pk_bf16_f32 v{t}, v{P}, v{P+1}")
        A(f"    v_cvt_pk_bf16_f32 v{t+1}, v{P+2}, v{P+3}")
        A(f"    v_cvt_pk_bf16_f32 v{t+2}, v{S}, v{S+1}")
        A(f"    v_cvt_pk_bf16_f32 v{t+3}, v{S+2}, v{S+3}")
        def unpack(dst, src0, src1):
            A(f"    v_lshlrev_b32 v{dst}, 16, v{src0}")
            A(f"    v_and_b32 v{dst+1}, s27, v{src0}")
            A(f"    v_lshlrev_b32 v{dst+2}, 16, v{src1}")
            A(f"    v_and_b32 v{dst+3}, s27, v{src1}")
        unpack(P, t, t + 1)
        unpack(S, t + 2, t + 3)
        for r in range(4):
            A(f"    v_sub_f32 v{P+r}, v{P+r}, v{S+r}")
        A(f"    v_cvt_pk_bf16_f32 v{t}, v{P}, v{P+1}")
        A(f"    v_cvt_pk_bf16_f32 v{t+1}, v{P+2}, v{P+3}")
        unpack(P, t, t + 1)
        for r in range(4):
            A(f"    v_mul_f32 v{P+r}, s30, v{P+r}")
        for r in range(4):
            A(f"    v_exp_f32 v{P+r}, v{P+r}")
        A("    s_nop 0")
        A(f"    v_cvt_pk_bf16_f32 v{t}, v{P}, v{P+1}")
        A(f"    v_cvt_pk_bf16_f32 v{t+1}, v{P+2}, v{P+3}")
        unpack(P, t, t + 1)
        for r in range(4):
            A(f"    v_fma_f32 v{P+r}, v{P+r}, s31, v{vC1}")
        A(f"    v_cvt_pk_bf16_f32 v{O}, v{P}, v{P+1}")
        A(f"    v_cvt_pk_bf16_f32 v{O+1}, v{P+2}, v{P+3}")

    def poll_full(sneed):
        l = lab("pf"); g = lab("pg")
        A(f"{l}:")
        A(f"    ds_read_b32 v{vFl}, v{vFa}")
        A("    s_waitcnt lgkmcnt(0)")
        A(f"    v_readfirstlane_b32 s45, v{vFl}")
        A("    s_nop 1")
        A(f"    s_cmp_ge_i32 s45, {sneed}")
        A(f"    s_cbranch_scc1 {g}")
        A("    s_sub_u32 s59, s59, 1")
        A("    s_cbranch_scc1 L_done")
        if SLEEP: A(f"    s_sleep {SLEEP}")
        A(f"    s_branch {l}")
        A(f"{g}:")

    A("    s_waitcnt vmcnt(0)")
    if QSH:
        A(f"    v_lshlrev_b32 v{vPq+2}, 3, v0")
        A(f"    v_add_u32 v{vPq+2}, {F_PQ}, v{vPq+2}")
        A("    s_cmp_ge_u32 s25, 2")
        A("    s_cbranch_scc1 L_noq2")
        if QSH == 2:
            poll_full(str(QLATE))
            for t in range(4):
                A(f"    buffer_load_dwordx4 {vr(vV+4*t,4)}, v{vPq+3}, s[12:15], s21 offen offset:{64*t}{qnt}")
            A("    s_waitcnt vmcnt(0)")
    for h in range(1 if QSH else 2):
        scale_regs(vV + 16 * h, 16, vD)
        A("    s_nop 2")
        for t in range(4):
            c = "0" if t == 0 else vr(vP, 4)
            A(f"    v_mfma_f32_16x16x32_bf16 {vr(vP,4)}, {vr(vOm+4*t,4)}, {vr(vV+16*h+4*t,4)}, {c}")
        A(f"    v_mfma_f32_16x16x4_f32 {vr(vS,4)}, v{vHalf}, v{vD}, 0")
        A("    s_nop 7")
        A("    s_nop 7")
        feat(vP, vS, vPq + 2 * h)
    if QSH:
        A("    s_lshl_b32 s44, s25, 9")
        A(f"    v_add_u32 v3, s44, v{vPq+2}")
        A(f"    ds_write_b64 v3, {vr(vPq,2)}")
        A("L_noq2:")

    A("    s_add_u32 s12, s40, s63")
    A("    s_addc_u32 s13, s41, 0")
    A("    s_and_b32 s13, s13, 0xffff")
    A("    s_mov_b32 s14, 2048")
    A("    s_mov_b32 s20, 1                            ; K needed: 2s+1")
    A("    s_mov_b32 s22, 0")
    A("    s_mov_b32 s23, 1                            ; epoch")
    A("L_bh:")
    for i in range(36):
        A(f"    v_mov_b32 v{vAcc+i}, 0")
    A("    s_mov_b32 s24, 16")
    A(".p2align 6")
    A("L_tile:")
    poll_full("s20")
    for u in range(2):
        for t in range(4):
            A(f"    ds_read_b128 {vr(vK+16*u+4*t,4)}, v{vKad+t} offset:{u*4096}")
    A("    s_add_u32 s21, s20, 1")
    A("    s_waitcnt lgkmcnt(0)")
    for u in range(2):
        scale_regs(vK + 16 * u, 16, vD + u)
    A("    s_nop 2")
    for u in range(2):
        for t in range(4):
            c = "0" if t == 0 else vr(vP + 4 * u, 4)
            A(f"    v_mfma_f32_16x16x32_bf16 {vr(vP+4*u,4)}, {vr(vK+16*u+4*t,4)}, {vr(vOm+4*t,4)}, {c}")
        A(f"    v_mfma_f32_16x16x4_f32 {vr(vS+4*u,4)}, v{vD+u}, v{vHalf}, 0")
    A("    s_nop 7")
    A("    s_nop 7")
    feat(vP, vS, vPhi)
    feat(vP + 4, vS + 4, vPhi + 2)
    if LAST:
        A("    s_cmp_eq_u32 s24, 1")
        A("    s_cbranch_scc1 L_last")
    poll_full("s21")
    for bb in range(8):
        for u in range(2):
            A(f"    ds_read_b64_tr_b16 {vr(vV+4*bb+2*u,2)}, v{vVad+bb} offset:{u*4096}")
    A("    s_add_u32 s22, s22, 1")
    A(f"    v_mov_b32 v{vFl}, s22")
    A("    s_waitcnt lgkmcnt(0)")
    A(f"    ds_write_b32 v{vX+6}, v{vFl}                ; free")
    for bb in range(8):
        A(f"    v_mfma_f32_16x16x32_bf16 {vr(vAcc+4*bb,4)}, {vr(vPhi,4)}, {vr(vV+4*bb,4)}, {vr(vAcc+4*bb,4)}")
    A(f"    v_mfma_f32_16x16x32_bf16 {vr(vZ,4)}, {vr(vPhi,4)}, {vr(vOnes,4)}, {vr(vZ,4)}")
    for t in range(4):
        A(f"    v_xor_b32 v{vKad+t}, 0x4000, v{vKad+t}")
    for b in range(8):
        A(f"    v_xor_b32 v{vVad+b}, 0x4000, v{vVad+b}")
    A("    s_add_u32 s20, s20, 2")
    A("    s_sub_u32 s24, s24, 1")
    def sync_done(val):
        A(f"    v_mov_b32 v{vFl}, {val}")
        A("    s_waitcnt lgkmcnt(0)")
        A(f"    ds_write_b32 v{vX+6}, v{vFl} offset:1024    ; done[c]")
        l = lab("pd")
        A(f"{l}:")
        A(f"    ds_read_b32 v{vFl}, v{vX+7}")
        A("    s_waitcnt lgkmcnt(0)")
        A("    s_sub_u32 s59, s59, 1")
        A("    s_cbranch_scc1 L_done")
        A(f"    v_cmp_gt_u32 vcc, {val}, v{vFl}")
        A(f"    s_cbranch_vccnz {l}")
    if LAST == 2:
        A("    s_cmp_lg_u32 s24, 1")
        A("    s_cbranch_scc1 L_tile")
        A("    s_lshl_b32 s44, s23, 1")
        A("    s_sub_u32 s44, s44, 1                       ; 2*epoch - 1")
        for k in range(1, 4):
            for bb in range(2):
                A(f"    ds_write_b128 v{vX+k-1}, {vr(vAcc+8*k+4*bb,4)} offset:{bb*1024}")
        sync_done("s44")
        for k in range(1, 4):
            for bb in range(2):
                A(f"    ds_read_b128 {vr(vV+8*(k-1)+4*bb,4)}, v{vX+3} offset:{(k-1)*2048+bb*1024}")
        A("    s_waitcnt lgkmcnt(0)")
        for k in range(1, 4):
            for bb in range(2):
                for r in range(4):
                    A(f"    v_add_f32 v{vAcc+4*bb+r}, v{vAcc+4*bb+r}, v{vV+8*(k-1)+4*bb+r}")
        A("    s_branch L_tile")
    elif LAST:
        A("    s_branch L_tile")
    else:
        A("    s_cmp_lg_u32 s24, 0")
        A("    s_cbranch_scc1 L_tile")

    if LAST:
        vDen, vRcp = vD, vD + 1
        A("L_last:")
        A("    v_lshlrev_b32 v3, 4, v0                     ; lane*16")
        A(f"    v_add_u32 v{vP+6}, s26, v3")
        A(f"    v_mfma_f32_16x16x32_bf16 {vr(vZ,4)}, {vr(vPhi,4)}, {vr(vOnes,4)}, {vr(vZ,4)}")
        A(f"    ds_write_b128 v{vP+6}, {vr(vPhi,4)} offset:16384")
        for k in range(1, 4):
            if LAST == 2: break
            for bb in range(2):
                A(f"    ds_write_b128 v{vX+k-1}, {vr(vAcc+8*k+4*bb,4)} offset:{bb*1024}")
        for k in range(1, 4):
            A(f"    s_add_u32 s45, s25, {k}")
            A(f"    s_and_b32 s45, s45, 3")
            A(f"    s_lshl_b32 s45, s45, 15")
            A(f"    v_add_u32 v{vS+k-1}, s45, v3")
            A(f"    s_sub_u32 s45, s45, s26")
            for b in range(2):
                A(f"    v_add_u32 v{vP+2*(k-1)+b}, s45, v{vVad+b}")
        if LAST == 2:
            A("    s_lshl_b32 s44, s23, 1                      ; 2*epoch")
            A("    s_nop 3")
            A(f"    ds_write_b128 v{vX+4}, {vr(vZ,4)}")
            sync_done("s44")
        else:
            A(f"    ds_write_b128 v{vX+4}, {vr(vZ,4)}")
            sync_done("s23")
        for k in range(1, 4):
            if LAST == 2: break
            for bb in range(2):
                A(f"    ds_read_b128 {vr(vK+8*(k-1)+4*bb,4)}, v{vX+3} offset:{(k-1)*2048+bb*1024}")
        for k in range(1, 4):
            A(f"    ds_read_b128 {vr(vV+16+4*(k-1),4)}, v{vS+k-1} offset:16384")
        for w in range(4):
            A(f"    ds_read_b128 {vr(vV+4*w,4)}, v{vX+5} offset:{w*1024}")
        if QSH:
            A(f"    ds_read_b64 {vr(vPq,2)}, v{vPq+2}")
        A("    v_lshlrev_b32 v3, 8, v1                     ; j*256")
        if ST16:
            A("    v_and_b32 v22, 1, v2")
            A("    v_lshl_add_u32 v3, v22, 5, v3               ; + (g&1)*32")
            A("    v_lshrrev_b32 v22, 1, v2")
            A("    v_lshl_add_u32 v3, v22, 4, v3               ; + (g>>1)*16")
        else:
            A("    v_lshl_add_u32 v3, v2, 3, v3                ; + g*8")
        A("    s_lshl_b32 s44, s25, 6")
        A("    v_add_u32 v3, s44, v3")
        A("    s_waitcnt lgkmcnt(0)")
        for k in range(1, 4):
            if LAST == 2: break
            for bb in range(2):
                for r in range(4):
                    A(f"    v_add_f32 v{vAcc+4*bb+r}, v{vAcc+4*bb+r}, v{vK+8*(k-1)+4*bb+r}")
        for w in range(1, 4):
            for r in range(4):
                A(f"    v_add_f32 v{vV+r}, v{vV+r}, v{vV+4*w+r}")
        A(f"    v_cvt_pk_bf16_f32 v{vT+8}, v{vV}, v{vV+1}")
        A(f"    v_cvt_pk_bf16_f32 v{vT+9}, v{vV+2}, v{vV+3}")
        A("    s_nop 1")
        A(f"    v_mfma_f32_16x16x16_bf16 {vr(vZ,4)}, {vr(vT+8,2)}, {vr(vPq,2)}, 0")
        A("    s_nop 7")
        A("    s_nop 1")
        A(f"    v_cvt_pk_bf16_f32 v{vDen}, v{vZ}, v{vZ}")
        A(f"    v_and_b32 v{vDen}, s27, v{vDen}")
        A(f"    v_add_f32 v{vDen}, v{vDen}, v{vC1}")
        A(f"    v_cvt_pk_bf16_f32 v{vDen}, v{vDen}, v{vDen}")
        A(f"    v_and_b32 v{vDen}, s27, v{vDen}               ; den")
        A(f"    v_rcp_f32 v{vRcp}, v{vDen}")
        poll_full("s21")
        for k in range(4):
            for b in range(2):
                ad = (vVad + b) if k == 0 else (vP + 2 * (k - 1) + b)
                for u in range(2):
                    A(f"    ds_read_b64_tr_b16 {vr(vK+8*k+4*b+2*u,2)}, v{ad} offset:{u*4096}")
        A("    s_add_u32 s22, s22, 1")
        A(f"    v_mov_b32 v{vFl}, s22")
        A("    s_waitcnt lgkmcnt(0)")
        A(f"    ds_write_b32 v{vX+6}, v{vFl}                ; free")
        for k in range(4):
            ph = vPhi if k == 0 else vV + 16 + 4 * (k - 1)
            for b in range(2):
                A(f"    v_mfma_f32_16x16x32_bf16 {vr(vAcc+4*b,4)}, {vr(ph,4)}, {vr(vK+8*k+4*b,4)}, {vr(vAcc+4*b,4)}")
        for t in range(4):
            A(f"    v_xor_b32 v{vKad+t}, 0x4000, v{vKad+t}")
        for b in range(8):
            A(f"    v_xor_b32 v{vVad+b}, 0x4000, v{vVad+b}")
        A("    s_add_u32 s20, s20, 2")
        for bb in range(2):
            A(f"    v_cvt_pk_bf16_f32 v{vT+2*bb}, v{vAcc+4*bb}, v{vAcc+4*bb+1}")
            A(f"    v_cvt_pk_bf16_f32 v{vT+2*bb+1}, v{vAcc+4*bb+2}, v{vAcc+4*bb+3}")
        A("    s_nop 1")
        for bb in range(2):
            A(f"    v_mfma_f32_16x16x16_bf16 {vr(vAcc+4*bb,4)}, {vr(vT+2*bb,2)}, {vr(vPq,2)}, 0")
        A("    s_nop 7")
        A("    s_nop 1")
    else:
        vDen, vRcp = vT, vT + 1
    if not LAST: A("    s_nop 7")
    if not LAST:
        for k in range(1, 4):
            for bb in range(2):
                A(f"    ds_write_b128 v{vX+k-1}, {vr(vAcc+8*k+4*bb,4)} offset:{bb*1024}")
        A(f"    ds_write_b128 v{vX+4}, {vr(vZ,4)}")
        A(f"    v_mov_b32 v{vFl}, s23")
        A("    s_waitcnt lgkmcnt(0)")
        A(f"    ds_write_b32 v{vX+6}, v{vFl} offset:1024")
        l = lab("pd")
        A(f"{l}:")
        A(f"    ds_read_b32 v{vFl}, v{vX+7}")
        A("    s_waitcnt lgkmcnt(0)")
        A("    s_sub_u32 s59, s59, 1")
        A("    s_cbranch_scc1 L_done")
        A(f"    v_cmp_gt_u32 vcc, s23, v{vFl}")
        A(f"    s_cbranch_vccnz {l}")
        for k in range(1, 4):
            for bb in range(2):
                A(f"    ds_read_b128 {vr(vK+8*(k-1)+4*bb,4)}, v{vX+3} offset:{(k-1)*2048+bb*1024}")
        for w in range(4):
            A(f"    ds_read_b128 {vr(vV+4*w,4)}, v{vX+5} offset:{w*1024}")
        if QSH:
            A(f"    ds_read_b64 {vr(vPq,2)}, v{vPq+2}")
        A("    v_lshlrev_b32 v3, 8, v1                     ; j*256")
        if ST16:
            A("    v_and_b32 v22, 1, v2")
            A("    v_lshl_add_u32 v3, v22, 5, v3               ; + (g&1)*32")
            A("    v_lshrrev_b32 v22, 1, v2")
            A("    v_lshl_add_u32 v3, v22, 4, v3               ; + (g>>1)*16")
        else:
            A("    v_lshl_add_u32 v3, v2, 3, v3                ; + g*8")
        A("    s_lshl_b32 s44, s25, 6")
        A("    v_add_u32 v3, s44, v3")
        A("    s_waitcnt lgkmcnt(0)")
        for k in range(1, 4):
            for bb in range(2):
                for r in range(4):
                    A(f"    v_add_f32 v{vAcc+4*bb+r}, v{vAcc+4*bb+r}, v{vK+8*(k-1)+4*bb+r}")
        for w in range(1, 4):
            for r in range(4):
                A(f"    v_add_f32 v{vV+r}, v{vV+r}, v{vV+4*w+r}")
        for bb in range(2):
            A(f"    v_cvt_pk_bf16_f32 v{vT+2*bb}, v{vAcc+4*bb}, v{vAcc+4*bb+1}")
            A(f"    v_cvt_pk_bf16_f32 v{vT+2*bb+1}, v{vAcc+4*bb+2}, v{vAcc+4*bb+3}")
        A(f"    v_cvt_pk_bf16_f32 v{vT+8}, v{vV}, v{vV+1}")
        A(f"    v_cvt_pk_bf16_f32 v{vT+9}, v{vV+2}, v{vV+3}")
        A("    s_nop 1")
        for bb in range(2):
            A(f"    v_mfma_f32_16x16x16_bf16 {vr(vAcc+4*bb,4)}, {vr(vT+2*bb,2)}, {vr(vPq,2)}, 0")
        A(f"    v_mfma_f32_16x16x16_bf16 {vr(vZ,4)}, {vr(vT+8,2)}, {vr(vPq,2)}, 0")
        A("    s_nop 7")
        A("    s_nop 1")
        A(f"    v_cvt_pk_bf16_f32 v{vT}, v{vZ}, v{vZ}")
        A(f"    v_and_b32 v{vT}, s27, v{vT}")
        A(f"    v_add_f32 v{vT}, v{vT}, v{vC1}")
        A(f"    v_cvt_pk_bf16_f32 v{vT}, v{vT}, v{vT}")
        A(f"    v_and_b32 v{vT}, s27, v{vT}               ; den")
        A(f"    v_rcp_f32 v{vT+1}, v{vT}")
    for bb in range(2):
        a = vAcc + 4 * bb
        A(f"    v_cvt_pk_bf16_f32 v{vT+2}, v{a}, v{a+1}")
        A(f"    v_cvt_pk_bf16_f32 v{vT+3}, v{a+2}, v{a+3}")
        A(f"    v_lshlrev_b32 v{a}, 16, v{vT+2}")
        A(f"    v_and_b32 v{a+1}, s27, v{vT+2}")
        A(f"    v_lshlrev_b32 v{a+2}, 16, v{vT+3}")
        A(f"    v_and_b32 v{a+3}, s27, v{vT+3}")
        for r in range(4):
            A(f"    v_mul_f32 v{vT+4+r}, v{a+r}, v{vRcp}")
        for r in range(4):
            A(f"    v_fma_f32 v{vT+8+r}, -v{vT+4+r}, v{vDen}, v{a+r}")
        for r in range(4):
            A(f"    v_fma_f32 v{vT+4+r}, v{vT+8+r}, v{vRcp}, v{vT+4+r}")
        for r in range(4):
            A(f"    v_div_fixup_f32 v{vT+4+r}, v{vT+4+r}, v{vDen}, v{a+r}")
        stp = (" " + STP.replace("_", " ")) if STP else ""
        if ST16:
            A(f"    v_cvt_pk_bf16_f32 v{vAcc+8+2*bb}, v{vT+4}, v{vT+5}")
            A(f"    v_cvt_pk_bf16_f32 v{vAcc+9+2*bb}, v{vT+6}, v{vT+7}")
        else:
            A(f"    v_cvt_pk_bf16_f32 v{a}, v{vT+4}, v{vT+5}")
            A(f"    v_cvt_pk_bf16_f32 v{a+1}, v{vT+6}, v{vT+7}")
            A(f"    buffer_store_dwordx2 {vr(a,2)}, v3, s[12:15], 0 offen offset:{bb*32}{stp}")
    if ST16:
        A("    s_nop 1")
        A(f"    v_permlane16_swap_b32 v{vAcc+8}, v{vAcc+10}")
        A(f"    v_permlane16_swap_b32 v{vAcc+9}, v{vAcc+11}")
        A("    s_nop 1")
        A(f"    buffer_store_dwordx4 {vr(vAcc+8,4)}, v3, s[12:15], 0 offen{stp}")
        A("    s_nop 1")
    A("    s_cmp_eq_u32 s23, 2")
    A("    s_cbranch_scc1 L_fin")
    A("    s_mov_b32 s23, 2")
    A(f"    s_add_u32 s12, s12, {2048 << HP}")
    A("    s_addc_u32 s13, s13, 0")
    if QSH:
        A(f"    v_add_u32 v{vPq+2}, 512, v{vPq+2}")
    else:
        A(f"    v_mov_b32 v{vPq}, v{vPq+2}")
        A(f"    v_mov_b32 v{vPq+1}, v{vPq+3}")
    A("    s_branch L_bh")
    A("L_fin:")
    if STAMP:
        A("L_stamp:")
        A("    s_waitcnt vmcnt(0)")
        A("    s_memrealtime s[50:51]")
        A("    s_getreg_b32 s52, hwreg(HW_REG_XCC_ID)")
        A("    s_getreg_b32 s53, hwreg(HW_REG_HW_ID)")
        A("    s_waitcnt lgkmcnt(0)")
        A("    s_mov_b32 s44, s46")
        A("    s_and_b32 s45, s47, 0xffff")
        A("    s_mov_b32 s46, 0x100000")
        A("    s_mov_b32 s47, 0x20000")
        for i, s in enumerate((48, 49, 50, 51, 52, 53)):
            A(f"    v_mov_b32 v{40+i}, s{s}")
        A("    v_readfirstlane_b32 s55, v200") if False else None
        A(f"    s_mul_i32 s54, s2, 5")
        A("    s_add_u32 s54, s54, s58")
        A("    s_lshl_b32 s54, s54, 5")
        A("    v_mov_b32 v46, s54")
        A("    v_cmp_eq_u32 vcc, 0, v0")
        A("    s_and_saveexec_b64 s[56:57], vcc")
        A("    buffer_store_dwordx4 v[40:43], v46, s[44:47], 0 offen")
        A("    buffer_store_dwordx2 v[44:45], v46, s[44:47], 0 offen offset:16")
        A("    s_mov_b64 exec, s[56:57]")
    A("L_done:")
    A("    s_endpgm")
    A('.section .rodata,"a"')
    A(".p2align 6")
    A(".amdhsa_kernel standalone__linear_kernel_rfa__sampling_kernel")
    A(f"  .amdhsa_next_free_vgpr {NV}")
    A("  .amdhsa_next_free_sgpr 96")
    A(f"  .amdhsa_accum_offset {NV}")
    A("  .amdhsa_group_segment_fixed_size 0")
    A("  .amdhsa_kernarg_size 56")
    A("  .amdhsa_user_sgpr_count 2")
    A("  .amdhsa_user_sgpr_kernarg_segment_ptr 1")
    A("  .amdhsa_system_sgpr_workgroup_id_x 1")
    A("  .amdhsa_float_denorm_mode_32 3")
    A(".end_amdhsa_kernel")
    L2 = [x for x in L if x is not None]
    s = "\n".join(L2) + "\n"
    if STAMP:
        s = s.replace("    s_lshr_b32 s25, s25, 6                      ; wave id\n", "    s_lshr_b32 s25, s25, 6                      ; wave id\n    s_mov_b32 s58, s25\n")
    return s

if __name__ == "__main__":
    kw = {}
    out = sys.argv[1]
    for a in sys.argv[2:]:
        k, v = a.split("=")
        try: v = int(v)
        except ValueError:
            try: v = float(v)
            except ValueError: pass
        kw[k] = v
    open(out, "w").write(gen(**kw))
```
